```python
import torch

def _softmax(x, axis=-1):
    return torch.softmax(x, dim=axis)

def _gelu(x):
    return torch.nn.functional.gelu(x, approximate='tanh')

def _silu(x):
    return torch.nn.functional.silu(x)

def _sigmoid(x):
    return torch.sigmoid(x)

def _layernorm(x, axis=-1, eps=1e-05):
    m = x.mean(dim=axis, keepdim=True)
    v = x.var(dim=axis, keepdim=True, unbiased=False)
    return (x - m) / torch.sqrt(v + eps)

def _scatter_add(tgt, idx, src, axis=0):
    return tgt.clone().index_add_(axis, idx, src)

def _segment_sum(src, seg, n):
    out = torch.zeros((n,) + src.shape[1:], dtype=src.dtype)
    return out.index_add_(0, seg, src)

def _pad(x, pw):
    flat = tuple((v for pair in reversed(pw) for v in pair))
    return torch.nn.functional.pad(x, flat)
kernel_name = 'adaLN_cond__gqa_block_cached__glu_gated_bilinear__decode'

def setup_inputs():

    _w = lambda a: (lambda t: t.to(torch.bfloat16) if t.is_floating_point() else t)(torch.as_tensor(a))

    def _A_setup():
        B, Sq, D = (1, 1, 512)
        Hq, Hkv, Sk, Dh = (32, 32, 4096, 128)
        assert Hq % Hkv == 0, (Hq, Hkv)
        return {'x': _w((lambda *s: torch.randn(*s, dtype=torch.bfloat16) * 0.05)(B, Sq, D)), 'k_cache': _w((lambda *s: torch.randn(*s, dtype=torch.bfloat16) * 0.8)(B, Hkv, Sk, Dh)), 'v_cache': _w((lambda *s: torch.randn(*s, dtype=torch.bfloat16) * 3.2)(B, Hkv, Sk, Dh)), 'wq': _w((lambda *s: torch.randn(*s, dtype=torch.bfloat16) * 0.8)(D, Hq * Dh) * D ** (-0.5)), 'wo': _w((lambda *s: torch.randn(*s, dtype=torch.bfloat16) * 3.2)(Hq * Dh, D) * (Hq * Dh) ** (-0.5))}
    _A_in = _A_setup()

    def _B_setup():
        B, S, D, F = (1, 1, 512, 1376)
        return {'x': _w((lambda *s: torch.randn(*s, dtype=torch.bfloat16) * 0.05)(B, S, D)), 'w_gate': _w((lambda *s: torch.randn(*s, dtype=torch.bfloat16) * 3.2)(D, F) * D ** (-0.5)), 'w_up': _w((lambda *s: torch.randn(*s, dtype=torch.bfloat16) * 3.2)(D, F) * D ** (-0.5)), 'w_down': _w((lambda *s: torch.randn(*s, dtype=torch.bfloat16) * 3.2)(F, D) * F ** (-0.5))}
    _B_in = _B_setup()
    return {'A_x': _A_in['x'], 'A_k_cache': _A_in['k_cache'], 'A_v_cache': _A_in['v_cache'], 'A_wq': _A_in['wq'], 'A_wo': _A_in['wo'], 'B_x': _B_in['x'], 'B_w_gate': _B_in['w_gate'], 'B_w_up': _B_in['w_up'], 'B_w_down': _B_in['w_down'], 'c': _w((lambda *s: torch.randn(*s, dtype=torch.bfloat16) * 0.4)(1, 512) * 8.0), 'w_mod': _w((lambda *s: torch.randn(*s, dtype=torch.bfloat16) * 0.4)(512, 6 * 512) * 512 ** (-0.5) * 8.0)}

def reference(A_x, A_k_cache, A_v_cache, A_wq, A_wo, B_x, B_w_gate, B_w_up, B_w_down, c, w_mod):

    def _A_ref(x, k_cache, v_cache, wq, wo):
        B, Sq, D = x.shape
        Hq, Dh = (32, 128)
        Hkv = k_cache.shape[1]
        rep = Hq // Hkv
        q = (lambda x, *d: x.permute(*d))((x @ wq).reshape(B, Sq, Hq, Dh), 0, 2, 1, 3)
        k = (lambda x, n, axis: torch.repeat_interleave(x, n, dim=axis))(k_cache, rep, axis=1)
        v = (lambda x, n, axis: torch.repeat_interleave(x, n, dim=axis))(v_cache, rep, axis=1)
        scores = torch.einsum('bhqd,bhkd->bhqk', q, k) * Dh ** (-0.5)
        p = _softmax(scores, axis=-1)
        o = torch.einsum('bhqk,bhkd->bhqd', p, v)
        return (lambda x, *d: x.permute(*d))(o, 0, 2, 1, 3).reshape(B, Sq, Hq * Dh) @ wo

    def _B_ref(x, w_gate, w_up, w_down):
        g = torch.einsum('bsd,df->bsf', x, w_gate)
        u = torch.einsum('bsd,df->bsf', x, w_up)
        h = g * u
        return torch.einsum('bsf,fd->bsd', h, w_down)
    x = A_x
    mod = (_silu(c) @ w_mod).reshape(c.shape[0], 6, 1, -1)
    sa, ca, ga, sb, cb, gb = (mod[:, 0].clone(), mod[:, 1].clone(), mod[:, 2].clone(), mod[:, 3].clone(), mod[:, 4].clone(), mod[:, 5].clone())
    h = _layernorm(x, axis=-1) * (1 + ca) + sa
    x = x + ga * _A_ref(h, A_k_cache, A_v_cache, A_wq, A_wo)
    h = _layernorm(x, axis=-1) * (1 + cb) + sb
    x = x + gb * _B_ref(h, B_w_gate, B_w_up, B_w_down)
    return x
```

```python
import re

TRANS = ('v_exp_f32', 'v_log_f32', 'v_rcp_f32', 'v_rsq_f32', 'v_sqrt_f32', 'v_sin_f32', 'v_cos_f32')

def regs_of(op):
    op = op.strip()
    op = op.lstrip('-')
    if op.startswith('abs(') or op.startswith('|'):
        op = op.replace('abs(', '').replace(')', '').replace('|', '')
    m = re.fullmatch(r'([vsa])(\d+)', op)
    if m: return {(m.group(1), int(m.group(2)))}
    m = re.fullmatch(r'([vsa])\[(\d+):(\d+)\]', op)
    if m: return {(m.group(1), i) for i in range(int(m.group(2)), int(m.group(3)) + 1)}
    if op == 'vcc': return {('s', 'vcc')}
    if op in ('vcc_lo', 'vcc_hi'): return {('s', 'vcc')}
    if op in ('exec', 'exec_lo', 'exec_hi'): return {('s', 'exec')}
    if op == 'm0': return {('s', 'm0')}
    return set()

class Ins:
    def __init__(self, text):
        self.text = text
        t = text.split(';')[0].strip()
        parts = t.split(None, 1)
        self.mn = parts[0]
        rest = parts[1] if len(parts) > 1 else ''
        ops, cur, depth = [], '', 0
        for ch in rest:
            if ch == '[': depth += 1
            if ch == ']': depth -= 1
            if ch == ',' and depth == 0:
                ops.append(cur); cur = ''
            else: cur += ch
        if cur.strip(): ops.append(cur)
        self.mods = ''
        if ops:
            last = ops[-1].strip().split(None, 1)
            ops[-1] = last[0]
            if len(last) > 1: self.mods = last[1]
        self.ops = [o.strip() for o in ops]
        mn = self.mn
        self.valu = mn.startswith('v_')
        self.mfma = mn.startswith('v_mfma')
        self.trans = any(mn.startswith(x) for x in TRANS)
        self.dpp = '_dpp' in mn
        self.perml = mn.startswith('v_permlane')
        self.rdlane = mn.startswith('v_readlane') or mn.startswith('v_readfirstlane')
        self.wrlane = mn.startswith('v_writelane')
        self.vmem = mn.startswith('buffer_') or mn.startswith('global_')
        self.ds = mn.startswith('ds_')
        self.salu = mn.startswith('s_') and not (mn.startswith('s_load') or mn.startswith('s_atomic') or mn.startswith('s_mem'))
        self.ldsdma = self.vmem and (' lds' in (' ' + self.mods) or '_lds_' in mn)
        R = [regs_of(o) for o in self.ops]
        self.defs, self.uses = set(), set()
        self.store_data = set()
        if self.valu:
            if self.perml:
                self.defs = R[0] | R[1]; self.uses = R[0] | R[1]
            else:
                self.defs = set(R[0])
                rest_i = 1
                if '_co_' in mn or mn.startswith('v_div_scale') or mn.startswith('v_mad_u64'):
                    self.defs |= R[1]; rest_i = 2
                for r in R[rest_i:]: self.uses |= r
                if mn.startswith('v_fmac') or mn.startswith('v_dot2c') or self.wrlane or self.dpp:
                    self.uses |= R[0]
                if mn.startswith('v_cndmask') and len(self.ops) == 3: self.uses |= {('s', 'vcc')}
            if self.mfma:
                self.srcC = R[3]; self.srcAB = R[1] | R[2]
        elif self.vmem:
            is_store = '_store' in mn or ('atomic' in mn and 'sc0' not in self.mods)
            if self.ldsdma:
                for r in R: self.uses |= r
                self.uses |= {('s', 'm0')}
            elif is_store:
                for r in R: self.uses |= r
                if 'x4' in mn or 'x3' in mn:
                    self.store_data = R[0] if mn.startswith('buffer_') else R[1]
            else:
                self.defs = set(R[0])
                for r in R[1:]: self.uses |= r
        elif self.ds:
            if 'read' in mn or '_rtn' in mn or 'permute' in mn or 'swizzle' in mn:
                self.defs = set(R[0])
                for r in R[1:]: self.uses |= r
            else:
                for r in R: self.uses |= r
        elif mn.startswith('s_'):
            if mn.startswith('s_cmp') or mn.startswith('s_cbranch') or mn in ('s_branch', 's_waitcnt', 's_barrier', 's_nop', 's_sleep', 's_endpgm', 's_setprio'):
                for r in R: self.uses |= r
            else:
                if R: self.defs = set(R[0])
                for r in R[1:]: self.uses |= r
                if 'saveexec' in mn: self.defs |= {('s', 'exec')}
        self.states = 1
        if mn == 's_nop': self.states = int(self.ops[0], 0) + 1

def need(prev, cur):
    n = 0
    vdef = {r for r in prev.defs if r[0] in 'va'}
    sdef = {r for r in prev.defs if r[0] == 's'}
    if prev.valu and not prev.mfma:
        if cur.dpp and (vdef & cur.uses): n = max(n, 2)
        if cur.mfma and (vdef & cur.uses): n = max(n, 2)
        if cur.perml and (vdef & cur.uses): n = max(n, 2)
        if cur.rdlane and (vdef & cur.uses): n = max(n, 1)
        if prev.trans and cur.valu and (vdef & cur.uses): n = max(n, 1)
        if cur.valu and (sdef & cur.uses): n = max(n, 4 if (cur.rdlane or cur.wrlane) else 2)
        if cur.vmem and (sdef & cur.uses): n = max(n, 5)
        if cur.salu and (sdef & cur.uses): n = max(n, 1)
        if cur.mn.startswith('s_cbranch_vcc') and ('s', 'vcc') in sdef: n = max(n, 1)
        if (cur.mn.startswith('s_load') or cur.mn.startswith('s_atomic')) and (sdef & cur.uses): n = max(n, 5)
    if prev.mfma:
        if cur.mfma:
            if vdef & cur.srcAB: n = max(n, 8)
            if (vdef & cur.srcC) and vdef != cur.srcC: n = max(n, 6)
        elif cur.valu or cur.vmem or cur.ds:
            if vdef & (cur.uses | cur.defs): n = max(n, 8)
        if cur.valu and not cur.mfma and (prev.srcC & cur.defs): n = max(n, 3)
    if prev.store_data and (cur.valu or cur.vmem or cur.ds) and (prev.store_data & cur.defs): n = max(n, 2)
    if prev.salu and ('s', 'm0') in prev.defs and cur.ldsdma: n = max(n, 1)
    return n

class Asm:
    def __init__(self):
        self.lines = []
        self.hist = []
        self.nlabel = 0
    def raw(self, t): self.lines.append(t)
    def label(self, name):
        self.lines.append(name + ':')
    def newlabel(self, base='L'):
        self.nlabel += 1
        return f'{base}_{self.nlabel}'
    def __call__(self, text):
        for t in text.split('\n'):
            t = t.strip()
            if not t or t.startswith(';'):
                if t: self.lines.append('    ' + t)
                continue
            if t.endswith(':'):
                self.label(t[:-1]); continue
            if t.startswith('.'):
                self.lines.append(t); continue
            ins = Ins(t)
            dist = 0; pad = 0
            for p in reversed(self.hist[-12:]):
                nd = need(p, ins)
                if nd > dist: pad = max(pad, nd - dist)
                dist += p.states
                if dist >= 10: break
            if pad:
                nop = Ins(f's_nop {pad - 1}')
                self.lines.append(f'    s_nop {pad - 1}')
                self.hist.append(nop)
            self.lines.append('    ' + t)
            self.hist.append(ins)
    def flush_hazards(self, n=8):
        self(f's_nop {n - 1}')
    def text(self): return '\n'.join(self.lines) + '\n'
```

```python
import sys
from asmlib import Asm

NAME = 'adaLN_cond__gqa_block_cached__glu_gated_bilinear__decode'

class Cfg:
    NN = 138
    NF = 98
    kvpol = 'nt'
    wpol = 'nt'
    stamps = False
    spin = 1 << 17
    def __init__(self, **kw):
        for k, v in kw.items(): setattr(self, k, v)
        assert 6 * self.NN + 2 * self.NF == 1024
        assert self.NN <= 144 and self.NF <= 144

EPOCH = 0
MODT = 0x1000
QT = 0x4000
SENT = 0x10000
OPART = 0x10000; OPITCH = 640
YPART = 0x38000
MOD2 = 0x3C000
HH = 0x3D000
X2 = 0x3E000
STAMPS = 0x100000
WSTR = 10240
ORED = 81920; ORP = 528
STAT = 90368
QL = 90496
CNT = 90752
RED = 90880; REDP = 272; REDB = 2176
LNS = 95232
LDS_TOTAL = 95744

LOG2E = '0x3fb8aa3b'
SCALE = '0x3db504f3'
EPS = '0x3727c5ac'
DPP = 'row_mask:0xf bank_mask:0xf'

P_X, P_K, P_V, P_WQ, P_WO, P_GATE, P_UP = 16, 18, 20, 22, 24, 28, 30
P_DOWN, P_C, P_WMOD, P_OUT, P_DBG, P_WS = 32, 34, 36, 38, 40, 42
def sp(p): return f's[{p}:{p+1}]'
def vr(a, n): return f'v[{a}:{a+n-1}]' if n > 1 else f'v{a}'

def generate(cfg):
    A = Asm()
    nst = [0]
    def stamp(i):
        if not cfg.stamps: return
        A('s_memrealtime s[98:99]')
        A('s_waitcnt lgkmcnt(0)')
        A(f'v_writelane_b32 v127, s98, {i}')
    def finish():
        if cfg.stamps:
            A('s_mov_b64 exec, -1')
            stamp(31)
            A('s_getreg_b32 s98, hwreg(HW_REG_XCC_ID)')
            A('v_writelane_b32 v127, s98, 30')
            A('s_lshl_b32 s98, s2, 4')
            A('s_add_u32 s98, s98, s3')
            A('s_lshl_b32 s98, s98, 8')
            A(f's_add_u32 s98, s98, {STAMPS}')
            A('v_lshl_add_u32 v126, v0, 2, s98')
            A(f'global_store_dword v126, v127, {sp(P_WS)}')
        A('s_endpgm')

    def srd(r, p, size):
        A(f's_mov_b32 s{r}, s{p}')
        A(f's_mov_b32 s{r+1}, s{p+1}')
        A(f's_mov_b32 s{r+2}, {size}')
        A(f's_mov_b32 s{r+3}, 0x20000')

    def dma_voff(v, WB, RP):
        lpr = WB // 16
        sh = lpr.bit_length() - 1
        A(f'v_lshrrev_b32 v{v}, {sh}, v0')
        A(f'v_mul_u32_u24 v{v}, {RP}, v{v}')
        A(f'v_and_b32 v1, {lpr-1}, v0')
        A(f'v_lshl_add_u32 v{v}, v1, 4, v{v}')

    def dma(srdr, v, soff, n, step, ldsoff):
        for j in range(n):
            A(f's_add_u32 m0, s12, {ldsoff + 1024*j}')
            A(f'buffer_load_dwordx4 v{v}, s[{srdr}:{srdr+3}], s{soff} offen {cfg.wpol} lds')
            if j + 1 < n: A(f's_add_u32 s{soff}, s{soff}, {step}')

    def tr_addr(v, WB):
        A(f'v_lshrrev_b32 v{v}, 4, v0')
        A(f'v_bfe_u32 v1, v0, 2, 2')
        A(f'v_lshl_add_u32 v{v}, v{v}, 3, v1')
        A(f'v_mul_u32_u24 v{v}, {WB}, v{v}')
        A(f'v_and_b32 v1, 3, v0')
        A(f'v_lshl_add_u32 v{v}, v1, 3, v{v}')
        A(f'v_add_u32 v{v}, s12, v{v}')

    def tr_frag(dst, v, off, WB):
        A(f'ds_read_b64_tr_b16 {vr(dst,2)}, v{v} offset:{off}')
        A(f'ds_read_b64_tr_b16 {vr(dst+2,2)}, v{v} offset:{off + 4*WB}')

    def make_A(a):
        for i, sh in enumerate((4, 8, 12)):
            A(f'v_mov_b32_dpp v{a+2+2*i}, v{a} row_shl:{sh} {DPP}')
            A(f'v_mov_b32_dpp v{a+3+2*i}, v{a+1} row_shl:{sh} {DPP}')

    def mfma(d, a, b, c=None):
        cc = vr(c, 4) if c is not None else '0'
        A(f'v_mfma_f32_16x16x32_bf16 {vr(d,4)}, {vr(a,4)}, {vr(b,4)}, {cc}')

    def red_write(ds, buf):
        A('s_mov_b64 exec, 0xffff')
        for t, d in enumerate(ds):
            A(f'ds_write_b32 v13, v{d} offset:{buf*REDB + 64*t}')
        A('s_mov_b64 exec, -1')
        A('s_waitcnt lgkmcnt(0)')

    def red_read(dst, buf, col):
        A(f'ds_read_b128 {vr(dst,4)}, v14 offset:{buf*REDB + 4*col}')

    def dpp_reduce(regs, steps, op='v_add_f32'):
        for st in steps:
            for r in regs:
                A(f'{op}_dpp v{r}, v{r}, v{r} {st} {DPP}')
    Q1, Q2, HM = 'quad_perm:[1,0,3,2]', 'quad_perm:[2,3,0,1]', 'row_half_mirror'
    R1, R2, R4, R8 = 'row_ror:1', 'row_ror:2', 'row_ror:4', 'row_ror:8'

    def unpack(dst, src, n):
        for i in range(n):
            A(f'v_lshlrev_b32 v{dst+2*i}, 16, v{src+i}')
            A(f'v_and_b32 v{dst+2*i+1}, 0xffff0000, v{src+i}')
    def pack(dst, src, n):
        for i in range(n):
            A(f'v_cvt_pk_bf16_f32 v{dst+i}, v{src+2*i}, v{src+2*i+1}')
    def round4(r, t):
        pack(t, r, 2); unpack(r, t, 2)
    def round1(r):
        A(f'v_cvt_pk_bf16_f32 v{r}, v{r}, v{r}')
        A(f'v_and_b32 v{r}, 0xffff0000, v{r}')

    def xrows(r, t, op):
        for pl in ('v_permlane16_swap_b32', 'v_permlane32_swap_b32'):
            A(f'v_mov_b32 v{t}, v{r}')
            A(f'{pl} v{r}, v{t}')
            A(f'{op} v{r}, v{r}, v{t}')

    def silu4(src, f, t, dst):
        unpack(f, src, 2)
        for i in range(4): A(f'v_mul_f32 v{t+i}, 0xbfb8aa3b, v{f+i}')
        for i in range(4): A(f'v_exp_f32 v{t+i}, v{t+i}')
        for i in range(4): A(f'v_add_f32 v{t+i}, 1.0, v{t+i}')
        for i in range(4): A(f'v_rcp_f32 v{t+i}, v{t+i}')
        for i in range(4): A(f'v_mul_f32 v{f+i}, v{f+i}, v{t+i}')
        pack(dst, f, 2)

    def ln_finish(mean, var):
        round1(var)
        round1(mean)
        A(f'v_add_f32 v{var}, {EPS}, v{var}')
        round1(var)
        A(f'v_sqrt_f32 v{var}, v{var}')
        round1(var)
        A(f'v_rcp_f32 v{var}, v{var}')
    def ln_norm4(x, mean, rinv, t):
        for i in range(4): A(f'v_sub_f32 v{x+i}, v{x+i}, v{mean}')
        round4(x, t)
        for i in range(4): A(f'v_mul_f32 v{x+i}, v{x+i}, v{rinv}')
        round4(x, t)

    def poll_begin():
        l = A.newlabel('Lpoll')
        A('s_mov_b32 s15, 0')
        A(f'{l}:')
        return l
    def poll_end_vcc(l, sleep=0):
        done = l + '_ok'
        A(f's_cbranch_vccz {done}')
        A('s_add_u32 s15, s15, 1')
        A(f's_cmp_lt_u32 s15, {cfg.spin}')
        if sleep: A(f's_sleep {sleep}')
        A(f's_cbranch_scc1 {l}')
        A(f'{done}:')
    def sentinel_check(regs, t):
        regs = list(regs)
        first = True
        while regs:
            if first:
                if len(regs) >= 3:
                    A(f'v_max3_u32 v{t}, v{regs[0]}, v{regs[1]}, v{regs[2]}'); regs = regs[3:]
                else:
                    A(f'v_max_u32 v{t}, v{regs[0]}, v{regs[1]}'); regs = regs[2:]
                first = False
            elif len(regs) >= 2:
                A(f'v_max3_u32 v{t}, v{t}, v{regs[0]}, v{regs[1]}'); regs = regs[2:]
            else:
                A(f'v_max_u32 v{t}, v{t}, v{regs[0]}'); regs = regs[1:]
        A(f'v_cmp_eq_u32 vcc, -1, v{t}')
    def lds_wait(off, target, sleep):
        l = A.newlabel('Lw')
        A('s_mov_b32 s15, 0')
        A(f'{l}:')
        A(f'ds_read_b32 v1, v15 offset:{off}')
        A('s_waitcnt lgkmcnt(0)')
        A('v_readfirstlane_b32 s9, v1')
        A(f's_cmp_ge_u32 s9, {target}')
        A(f's_cbranch_scc1 {l}_ok')
        A('s_add_u32 s15, s15, 1')
        A(f's_cmp_lt_u32 s15, {cfg.spin * 4}')
        if sleep is not None: A(f's_sleep {sleep}')
        A(f's_cbranch_scc1 {l}')
        A(f'{l}_ok:')
    def lds_inc(off):
        A('s_mov_b64 exec, 1')
        A('v_mov_b32 v1, 1')
        A(f'ds_add_u32 v15, v1 offset:{off}')
        A('s_mov_b64 exec, -1')

    def l8_consts():
        A(f's_mul_i32 s12, s3, {WSTR}')
        A('v_bfe_u32 v12, v0, 3, 1')
        A('v_lshlrev_b32 v12, 5, v12')
        A('v_lshrrev_b32 v1, 4, v0')
        A('v_lshl_add_u32 v12, v1, 3, v12')
        A('v_and_b32 v1, 4, v0')
        A('s_lshl_b32 s9, s3, 6')
        A('v_add3_u32 v12, v12, v1, s9')
        A(f's_mul_i32 s9, s3, {REDP}')
        A(f's_add_u32 s9, s9, {RED}')
        A('v_lshl_add_u32 v13, v0, 2, s9')
        A('v_and_b32 v14, 7, v0')
        A(f'v_mul_u32_u24 v14, {REDP}, v14')
        A('v_lshrrev_b32 v1, 3, v0')
        A('v_lshl_add_u32 v14, v1, 4, v14')
        A(f'v_add_u32 v14, {RED}, v14')

    A('s_cmp_ge_u32 s2, 256')
    A('s_cbranch_scc1 Lexit')
    A('s_load_dwordx16 s[16:31], s[0:1], 0')
    A('s_load_dwordx8 s[32:39], s[0:1], 64')
    A('s_load_dwordx4 s[40:43], s[0:1], 96')
    if cfg.stamps:
        A('s_memrealtime s[96:97]')
    A('v_lshrrev_b32 v1, 6, v0')
    A('v_and_b32 v0, 63, v0')
    A('v_readfirstlane_b32 s3, v1')
    A(f'v_mov_b32 v15, {CNT}')
    A('v_mov_b32 v2, 0'); A('v_mov_b32 v3, 0'); A('v_mov_b32 v4, 0'); A('v_mov_b32 v5, 0')
    A('s_lshr_b32 s4, s2, 3')
    A('s_and_b32 s5, s2, 7')
    A('s_cmp_lg_u32 s3, 0')
    A('s_cbranch_scc1 Lnoinit')
    A('ds_write_b128 v15, v[2:5]')
    A('Lnoinit:')
    A('s_and_b32 s6, s4, 1')
    A('s_lshl_b32 s6, s6, 1')
    A('s_xor_b32 s6, s6, s5')
    A(f's_mov_b32 s9, {cfg.NN}')
    A('s_cmp_lt_u32 s6, 2')
    A(f's_cselect_b32 s9, {cfg.NF}, s9')
    A(f's_cselect_b32 s10, 0, {2*cfg.NF - 2*cfg.NN}')
    A('s_mul_i32 s11, s6, s9')
    A('s_add_u32 s10, s10, s11')
    A('s_mul_i32 s11, s3, s9')
    A('s_add_u32 s9, s9, s11')
    A('s_lshr_b32 s11, s11, 4')
    A('s_lshr_b32 s9, s9, 4')
    A('s_sub_u32 s8, s9, s11')
    A('s_add_u32 s10, s10, s11')
    A('s_lshl_b32 s10, s10, 10')
    A('s_lshl_b32 s11, s4, 20')
    A('s_add_u32 s10, s10, s11')
    A('s_lshl_b32 s46, s8, 10')
    A('s_mov_b32 s47, 0x20000')
    A('s_mov_b32 s50, s46')
    A('s_mov_b32 s51, 0x20000')
    A('s_mov_b32 s60, 4096')
    A('s_mov_b32 s61, 8192')
    A('v_bfe_u32 v10, v0, 2, 2')
    A('v_lshlrev_b32 v10, 8, v10')
    A('v_lshrrev_b32 v1, 4, v0')
    A('v_lshl_add_u32 v10, v1, 6, v10')
    A('v_and_b32 v1, 3, v0')
    A('v_lshl_add_u32 v10, v1, 4, v10')
    A('v_lshlrev_b32 v11, 4, v0')
    A('s_waitcnt lgkmcnt(0)')
    A(f's_load_dword s7, {sp(P_WS)}, {EPOCH}')
    A(f's_add_u32 s44, s{P_K}, s10')
    A(f's_addc_u32 s45, s{P_K+1}, 0')
    A(f's_add_u32 s48, s{P_V}, s10')
    A(f's_addc_u32 s49, s{P_V+1}, 0')
    if cfg.stamps:
        A('v_mov_b32 v127, 0')
        A('v_writelane_b32 v127, s96, 0')
    A('s_barrier')
    A('s_cmp_lt_u32 s6, 2')
    A('s_cbranch_scc0 Lkv')

    A('s_cmp_lt_u32 s3, 8')
    A('s_cbranch_scc1 Lfront')
    A('s_barrier'); A('s_barrier'); A('s_barrier')
    A('s_branch Lkv')
    A('Lfront:')
    l8_consts()
    A('s_cmp_lt_u32 s3, 4')
    A('s_cbranch_scc0 Lnosent')
    A('s_lshl_b32 s9, s4, 1'); A('s_add_u32 s9, s9, s6')
    A('s_lshl_b32 s9, s9, 2'); A('s_add_u32 s9, s9, s3')
    A('s_lshl_b32 s9, s9, 10'); A(f's_add_u32 s9, s9, {SENT}')
    A('v_add_u32 v6, s9, v11')
    for i in range(4): A(f'v_mov_b32 v{2+i}, -1')
    A(f'global_store_dwordx4 v6, v[2:5], {sp(P_WS)} sc1')
    A('Lnosent:')
    A('v_lshlrev_b32 v7, 1, v12')
    A(f'global_load_dwordx2 v[48:49], v7, {sp(P_C)}')
    A(f'global_load_dwordx4 v[52:55], v11, {sp(P_X)}')
    A(f'global_load_dwordx2 v[50:51], v7, {sp(P_X)}')
    srd(52, P_WMOD, 512 * 6144)
    srd(56, P_WQ, 512 * 8192)
    dma_voff(8, 32, 6144)
    dma_voff(9, 128, 8192)
    A('s_lshl_b32 s13, s5, 4'); A('s_lshr_b32 s9, s4, 1'); A('s_add_u32 s13, s13, s9')
    A(f's_mul_i32 s9, s3, {64*6144}')
    A('s_lshl_b32 s10, s13, 5')
    A('s_add_u32 s10, s10, s9')
    dma(52, 8, 10, 2, 32 * 6144, 8192)
    A(f's_lshl_b32 s10, s3, 19')
    A('s_lshl_b32 s9, s4, 8'); A('s_add_u32 s10, s10, s9')
    A('s_lshl_b32 s9, s6, 7'); A('s_add_u32 s10, s10, s9')
    dma(56, 9, 10, 8, 8 * 8192, 0)
    tr_addr(8, 32)
    tr_addr(9, 128)
    stamp(1)
    A('s_waitcnt vmcnt(10)')
    silu4(48, 60, 64, 72)
    make_A(72)
    unpack(60, 52, 4)
    A('v_add_f32 v2, v60, v61'); A('v_add_f32 v3, v62, v63'); A('v_add_f32 v4, v64, v65'); A('v_add_f32 v5, v66, v67')
    A('v_add_f32 v2, v2, v3'); A('v_add_f32 v4, v4, v5'); A('v_add_f32 v2, v2, v4')
    dpp_reduce([2], [R1, R2, R4, R8])
    xrows(2, 3, 'v_add_f32')
    A('v_mul_f32 v2, 0x3b000000, v2')
    for i in range(8): A(f'v_sub_f32 v{60+i}, v{60+i}, v2')
    A('v_mul_f32 v4, v60, v60')
    for i in range(1, 8): A(f'v_fmac_f32 v4, v{60+i}, v{60+i}')
    dpp_reduce([4], [R1, R2, R4, R8])
    xrows(4, 3, 'v_add_f32')
    A('v_mul_f32 v4, 0x3b000000, v4')
    ln_finish(2, 4)
    unpack(56, 50, 2)
    ln_norm4(56, 2, 4, 60)
    A('s_waitcnt vmcnt(8)')
    stamp(2)
    tr_frag(16, 8, 8192, 32)
    tr_frag(20, 8, 8192 + 32 * 32, 32)
    A('s_waitcnt lgkmcnt(0)')
    mfma(80, 72, 16)
    mfma(80, 76, 20, 80)
    red_write([80], 0)
    A('s_barrier')
    A('s_add_u32 s7, s7, 1')
    A('s_cmp_eq_u32 s3, 0')
    A('s_cbranch_scc0 Lf1done')
    red_read(60, 0, 0)
    A('s_waitcnt lgkmcnt(0)')
    dpp_reduce([60, 61, 62, 63], [Q1, Q2, HM])
    A('v_cvt_pk_bf16_f32 v64, v60, v61'); A('v_mov_b32 v65, s7')
    A('v_cvt_pk_bf16_f32 v66, v62, v63'); A('v_mov_b32 v67, s7')
    A('s_lshl_b32 s9, s13, 6'); A(f's_add_u32 s9, s9, {MODT}')
    A('v_lshl_add_u32 v6, v0, 1, s9')
    A('s_mov_b64 exec, 0x01010101')
    A(f'global_store_dwordx4 v6, v[64:67], {sp(P_WS)} sc1')
    A('s_mov_b64 exec, -1')
    A('Lf1done:')
    stamp(3)
    A(f'v_mov_b32 v6, {MODT}')
    A('v_lshl_add_u32 v6, v12, 2, v6')
    l = poll_begin()
    A(f'global_load_dwordx4 v[60:63], v6, {sp(P_WS)} sc1')
    A(f'global_load_dwordx4 v[68:71], v6, {sp(P_WS)} offset:2048 sc1')
    A('s_waitcnt vmcnt(0)')
    A('v_xor_b32 v2, s7, v61'); A('v_xor_b32 v3, s7, v63'); A('v_xor_b32 v4, s7, v69'); A('v_xor_b32 v5, s7, v71')
    A('v_or3_b32 v2, v2, v3, v4'); A('v_or_b32 v2, v2, v5')
    A('v_cmp_ne_u32 vcc, 0, v2')
    poll_end_vcc(l, 1)
    stamp(4)
    for blk in range(2):
        for t in range(4):
            tr_frag(16 + 16 * blk + 4 * t, 9, blk * 32 * 128 + 32 * t, 128)
    A('v_mov_b32 v61, v62'); A('v_mov_b32 v69, v70')
    unpack(64, 68, 2)
    for i in range(4): A(f'v_add_f32 v{64+i}, 1.0, v{64+i}')
    round4(64, 2)
    for i in range(4): A(f'v_mul_f32 v{56+i}, v{56+i}, v{64+i}')
    round4(56, 2)
    unpack(64, 60, 2)
    for i in range(4): A(f'v_add_f32 v{56+i}, v{56+i}, v{64+i}')
    pack(72, 56, 2)
    make_A(72)
    A('s_waitcnt lgkmcnt(0)')
    for t in range(4): mfma(80 + 4 * t, 72, 16 + 4 * t)
    for t in range(4): mfma(80 + 4 * t, 76, 32 + 4 * t, 80 + 4 * t)
    red_write([80, 84, 88, 92], 1)
    A('s_barrier')
    A('s_cmp_lt_u32 s3, 2')
    A('s_cbranch_scc0 Lf2done')
    A('s_lshl_b32 s9, s3, 7')
    A('v_add_u32 v14, s9, v14')
    red_read(60, 1, 0)
    A('s_waitcnt lgkmcnt(0)')
    dpp_reduce([60, 61, 62, 63], [Q1, Q2, HM])
    A('v_cvt_pk_bf16_f32 v64, v60, v61'); A('v_mov_b32 v65, s7')
    A('v_cvt_pk_bf16_f32 v66, v62, v63'); A('v_mov_b32 v67, s7')
    A('s_lshl_b32 s10, s4, 9'); A('s_add_u32 s9, s9, s10')
    A('s_lshl_b32 s10, s6, 8'); A('s_add_u32 s9, s9, s10')
    A(f's_add_u32 s9, s9, {QT}')
    A('v_lshl_add_u32 v6, v0, 1, s9')
    A('s_mov_b32 exec_lo, 0x01010101'); A('s_mov_b32 exec_hi, 0x01010101')
    A(f'global_store_dwordx4 v6, v[64:67], {sp(P_WS)} sc1')
    A('s_mov_b64 exec, -1')
    A('Lf2done:')
    A('s_sub_u32 s7, s7, 1')
    A('s_barrier')
    stamp(5)

    A('Lkv:')
    KB, VB = 16, 52
    for base, srdr, v in ((KB, 44, 10), (VB, 48, 11)):
        for j in range(9):
            so = ('0', 's60', 's61')[j >> 2]
            A(f'buffer_load_dwordx4 {vr(base+4*j,4)}, v{v}, s[{srdr}:{srdr+3}], {so} offen offset:{1024*(j&3)} {cfg.kvpol}')
    lds_inc(4)
    stamp(6)
    A('s_waitcnt lgkmcnt(0)')
    A('s_add_u32 s7, s7, 1')
    A('s_cmp_lt_u32 s3, 4')
    A('s_cbranch_scc0 Lqwait')
    A('s_lshl_b32 s9, s4, 9'); A('s_lshl_b32 s10, s3, 7'); A('s_add_u32 s9, s9, s10'); A(f's_add_u32 s9, s9, {QT}')
    A(f's_add_u32 s10, s{P_WS}, s9'); A(f's_addc_u32 s11, s{P_WS+1}, 0')
    A('s_mov_b32 s15, 0')
    A('Lqpoll:')
    A('s_load_dwordx16 s[64:79], s[10:11], 0 glc')
    A('s_load_dwordx16 s[80:95], s[10:11], 64 glc')
    A('s_waitcnt lgkmcnt(0)')
    A('s_xor_b32 s9, s65, s7')
    for i in range(1, 16):
        A(f's_xor_b32 s13, s{65+2*i}, s7')
        A('s_or_b32 s9, s9, s13')
    A('s_cbranch_scc0 Lqgot')
    A('s_add_u32 s15, s15, 1')
    A(f's_cmp_lt_u32 s15, {cfg.spin}')
    A('s_sleep 2')
    A('s_cbranch_scc1 Lqpoll')
    A('Lqgot:')
    for i in range(16): A(f'v_writelane_b32 v1, s{64+2*i}, {i}')
    A('s_lshl_b32 s9, s3, 6'); A(f's_add_u32 s9, s9, {QL}')
    A('v_lshl_add_u32 v2, v0, 2, s9')
    A('s_mov_b64 exec, 0xffff')
    A('ds_write_b32 v2, v1')
    A('s_waitcnt lgkmcnt(0)')
    lds_inc(0)
    A('Lqwait:')
    A('v_and_b32 v2, 1, v0')
    A('v_lshlrev_b32 v2, 4, v2')
    A('v_mov_b32 v3, 0xffff')
    A('v_lshlrev_b32 v3, v2, v3')
    A('v_bfe_u32 v2, v0, 1, 2')
    for wv in range(4):
        A(f'v_cmp_eq_u32 vcc, {wv}, v2')
        A(f'v_cndmask_b32 v{104+wv}, 0, v3, vcc')
    A('v_lshrrev_b32 v8, 4, v0')
    A('v_and_b32 v1, 3, v0')
    A('v_lshl_add_u32 v8, v8, 2, v1')
    A('v_lshlrev_b32 v8, 4, v8')
    A('v_bfe_u32 v9, v0, 2, 2')
    A('s_mov_b32 s62, 0xaaaaaaaa'); A('s_mov_b32 s63, 0xaaaaaaaa')
    A('s_mov_b32 s52, 0xcccccccc'); A('s_mov_b32 s53, 0xcccccccc')
    lds_wait(0, 4, 2)
    stamp(7)
    A(f'v_add_u32 v8, {QL}, v8')
    A('ds_read_b128 v[4:7], v8')
    A('s_waitcnt lgkmcnt(0)')
    for u in range(4):
        A(f'v_cmp_eq_u32 vcc, {u}, v9')
        for i in range(4): A(f'v_cndmask_b32 v{88+4*u+i}, 0, v{4+i}, vcc')
    for G in range(3):
        for u in range(4 if G < 2 else 1):
            j = 4 * G + u
            A(f's_waitcnt vmcnt({17-j})')
            mfma(108 + 4 * G, KB + 4 * j, 88 + 4 * u, None if u == 0 else 108 + 4 * G)
    stamp(8)
    for G in range(3):
        d = 108 + 4 * G
        A(f'v_cndmask_b32 v{d}, v{d}, v{d+1}, s[62:63]')
        A(f'v_cndmask_b32 v{d+2}, v{d+2}, v{d+3}, s[62:63]')
    for G in range(3):
        d = 108 + 4 * G
        A(f'v_cndmask_b32 v{2+G}, v{d}, v{d+2}, s[52:53]')
    dpp_reduce([2, 3, 4], [Q1, Q2])
    A('v_cvt_pk_bf16_f32 v5, v2, v3'); A('v_cvt_pk_bf16_f32 v6, v4, v4')
    A('v_lshlrev_b32 v2, 16, v5'); A('v_and_b32 v3, 0xffff0000, v5'); A('v_lshlrev_b32 v4, 16, v6')
    for G in range(3): A(f'v_mul_f32 v{2+G}, {SCALE}, v{2+G}')
    A('v_cvt_pk_bf16_f32 v5, v2, v3'); A('v_cvt_pk_bf16_f32 v6, v4, v4')
    A('v_lshlrev_b32 v2, 16, v5'); A('v_and_b32 v3, 0xffff0000, v5'); A('v_lshlrev_b32 v4, 16, v6')
    A('v_mov_b32 v7, 0xff800000')
    for G in range(3):
        A(f's_sub_i32 s9, s8, {4*G}')
        A(f'v_cmp_gt_i32 vcc, s9, v9')
        A(f'v_cndmask_b32 v{2+G}, v7, v{2+G}, vcc')
    A('v_max3_f32 v124, v2, v3, v4')
    A('v_max_f32 v124, 0xff7fffff, v124')
    dpp_reduce([124], [R4, R8], 'v_max_f32')
    xrows(124, 5, 'v_max_f32')
    for G in range(3): A(f'v_sub_f32 v{2+G}, v{2+G}, v124')
    for G in range(3): A(f'v_mul_f32 v{2+G}, {LOG2E}, v{2+G}')
    for G in range(3): A(f'v_exp_f32 v{2+G}, v{2+G}')
    A('v_add_f32 v125, v2, v3')
    for G in range(3): A(f'v_cvt_pk_bf16_f32 v{5+G}, v{2+G}, v{2+G}')
    A('v_add_f32 v125, v125, v4')
    dpp_reduce([125], [R4, R8])
    xrows(125, 1, 'v_add_f32')
    A(f's_mul_i32 s9, s3, {ORP}'); A(f's_add_u32 s9, s9, {ORED}')
    A('v_and_b32 v2, 15, v0'); A('v_lshlrev_b32 v2, 5, v2')
    A('v_and_b32 v3, 16, v0')
    A('v_add3_u32 v2, v2, v3, s9')
    A('s_lshl_b32 s9, s3, 3'); A(f's_add_u32 s9, s9, {STAT}')
    A('v_mov_b32 v3, s9')
    A('ds_write_b64 v3, v[124:125]')
    def a_set(j):
        G, u = j >> 2, j & 3
        for i in range(4):
            A(f'v_and_b32_dpp v{88+4*(j&3)+i}, v{5+G}, v{104+i} row_newbcast:{4*u} {DPP}')
    a_set(0); a_set(1)
    for j in range(9):
        if j + 2 < 9: a_set(j + 2)
        A(f's_waitcnt vmcnt({8-j})')
        mfma(120, 88 + 4 * (j & 3), VB + 4 * j, None if j == 0 else 120)
    A('s_mov_b32 exec_hi, 0')
    A('ds_write_b128 v2, v[120:123]')
    A('s_waitcnt lgkmcnt(0)')
    lds_inc(8)
    stamp(9)
    A('s_cmp_lt_u32 s3, 8')
    A('s_cbranch_scc1 Ltail')

    A('v_and_b32 v2, 15, v0')
    A('v_lshlrev_b32 v3, 3, v2')
    A(f'v_add_u32 v3, {STAT}, v3')
    A(f'v_mul_u32_u24 v2, {ORP}, v2')
    A('v_and_b32 v4, 48, v0')
    A('s_sub_u32 s10, s3, 8'); A('s_lshl_b32 s10, s10, 6')
    A(f's_add_u32 s9, s10, {ORED}')
    A('v_add3_u32 v2, v2, v4, s9')
    A(f's_mul_i32 s11, s2, {OPITCH}'); A(f's_add_u32 s11, s11, {OPART}')
    A('s_add_u32 s10, s10, s11')
    A('v_add_u32 v4, s10, v4')
    A('v_mov_b32 v5, s11')
    lds_wait(8, 16, None)
    stamp(10)
    A('ds_read_b64 v[16:17], v3')
    A('ds_read_b128 v[20:23], v2')
    A('s_waitcnt lgkmcnt(1)')
    A('v_mov_b32 v18, v16')
    dpp_reduce([18], [R1, R2, R4, R8], 'v_max_f32')
    A('v_sub_f32 v16, v16, v18')
    A(f'v_mul_f32 v16, {LOG2E}, v16')
    A('v_exp_f32 v16, v16')
    A('s_waitcnt lgkmcnt(0)')
    A('v_mul_f32 v19, v17, v16')
    for i in range(4): A(f'v_mul_f32 v{20+i}, v{20+i}, v16')
    dpp_reduce([20, 21, 22, 23, 19], [R1, R2, R4, R8])
    A('s_mov_b32 exec_lo, 0x00010001'); A('s_mov_b32 exec_hi, 0x00010001')
    A(f'global_store_dwordx4 v4, v[20:23], {sp(P_WS)} sc1')
    A('s_cmp_eq_u32 s3, 8')
    A('s_cbranch_scc0 Lcombdone')
    A('s_mov_b64 exec, 1')
    A(f'global_store_dwordx2 v5, v[18:19], {sp(P_WS)} offset:512 sc1')
    A('Lcombdone:')
    finish()

    A('Ltail:')
    l8_consts()
    A('v_lshlrev_b32 v7, 1, v12')
    A('s_cmp_lt_u32 s4, 16')
    A('s_cbranch_scc1 LroleW')
    A('s_cmp_lt_u32 s4, 22')
    A('s_cbranch_scc1 LroleU')
    A('s_cmp_lt_u32 s4, 28')
    A('s_cbranch_scc1 LroleM')

    A('s_lshl_b32 s13, s5, 2'); A('s_add_u32 s13, s13, s4'); A('s_sub_u32 s13, s13, 28')
    srd(52, P_DOWN, 1376 * 1024)
    srd(56, P_WMOD, 512 * 6144)
    dma_voff(8, 32, 1024)
    dma_voff(9, 32, 6144)
    A('s_lshl_b32 s10, s3, 15'); A('s_lshl_b32 s9, s13, 5'); A('s_add_u32 s10, s10, s9')
    A(f's_mul_i32 s11, s3, {64*6144}'); A('s_add_u32 s11, s11, s9'); A(f's_add_u32 s11, s11, {2560*2}')
    lds_wait(4, 16, 1)
    stamp(11)
    A(f'global_load_dwordx2 v[48:49], v7, {sp(P_C)}')
    dma(56, 9, 11, 2, 32 * 6144, 6144)
    dma(52, 8, 10, 6, 8 * 32 * 1024, 0)
    tr_addr(8, 32)
    A('s_waitcnt vmcnt(8)')
    silu4(48, 60, 64, 72)
    make_A(72)
    A('s_waitcnt vmcnt(6)')
    tr_frag(16, 8, 6144, 32); tr_frag(20, 8, 6144 + 1024, 32)
    A('s_waitcnt lgkmcnt(0)')
    mfma(80, 72, 16); mfma(80, 76, 20, 80)
    red_write([80], 0)
    A('s_waitcnt vmcnt(0)')
    stamp(12)
    for j in range(6): tr_frag(16 + 4 * j, 8, 1024 * j, 32)
    A('s_barrier')
    A('v_and_b32 v6, 48, v0')
    A('s_lshl_b32 s9, s3, 6'); A(f's_add_u32 s9, s9, {HH}')
    A('v_add_u32 v6, s9, v6')
    A('s_cmp_lt_u32 s3, 3')
    A('s_cselect_b32 s9, 2560, 0')
    A('v_add_u32 v5, s9, v6')
    A('s_cmp_eq_u32 s3, 0')
    A('s_cbranch_scc0 LDnogb')
    red_read(96, 0, 0)
    A('v_and_b32 v4, 24, v0')
    A('s_lshl_b32 s9, s13, 5')
    A('v_add_u32 v4, s9, v4')
    A(f'v_add_u32 v3, {X2}, v4')
    A('s_waitcnt lgkmcnt(0)')
    dpp_reduce([96, 97, 98, 99], [Q1, Q2, HM])
    round4(96, 100)
    l = poll_begin()
    A(f'global_load_dwordx2 v[104:105], v3, {sp(P_WS)} sc1')
    A('s_waitcnt vmcnt(0)')
    sentinel_check([104, 105], 2)
    poll_end_vcc(l, 1)
    unpack(100, 104, 2)
    A('LDnogb:')
    stamp(13)
    l = poll_begin()
    for j in range(5):
        A(f'global_load_dwordx4 {vr(48+4*j,4)}, v6, {sp(P_WS)} offset:{512*j} sc1')
    A(f'global_load_dwordx4 v[68:71], v5, {sp(P_WS)} sc1')
    A('s_waitcnt vmcnt(0)')
    sentinel_check(range(48, 72), 2)
    poll_end_vcc(l)
    stamp(14)
    A('s_waitcnt lgkmcnt(0)')
    for j in range(6): mfma(80, 48 + 4 * j, 16 + 4 * j, None if j == 0 else 80)
    red_write([80], 1)
    A('s_barrier')
    A('s_cmp_eq_u32 s3, 0')
    A('s_cbranch_scc0 LDend')
    red_read(60, 1, 0)
    A('s_waitcnt lgkmcnt(0)')
    dpp_reduce([60, 61, 62, 63], [Q1, Q2, HM])
    round4(60, 64)
    for i in range(4): A(f'v_mul_f32 v{60+i}, v{60+i}, v{96+i}')
    round4(60, 64)
    for i in range(4): A(f'v_add_f32 v{60+i}, v{60+i}, v{100+i}')
    pack(64, 60, 2)
    A('s_mov_b64 exec, 0x01010101')
    A(f'global_store_dwordx2 v4, v[64:65], {sp(P_OUT)}')
    A('s_cmp_eq_u32 s13, 0')
    A('s_cbranch_scc0 LDend')
    A('s_mov_b64 exec, 1')
    A('v_mov_b32 v2, 0'); A('v_mov_b32 v3, s7')
    A(f'global_store_dword v2, v3, {sp(P_WS)} offset:{EPOCH} sc1')
    A('LDend:')
    finish()

    A('LroleM:')
    A('s_mul_i32 s13, s5, 6'); A('s_add_u32 s13, s13, s4'); A('s_sub_u32 s13, s13, 22')
    srd(52, P_WMOD, 512 * 6144)
    dma_voff(8, 64, 6144)
    A(f's_mul_i32 s10, s3, {64*6144}'); A('s_lshl_b32 s9, s13, 6'); A('s_add_u32 s10, s10, s9'); A('s_add_u32 s10, s10, 2048')
    lds_wait(4, 16, 1)
    stamp(11)
    A(f'global_load_dwordx2 v[48:49], v7, {sp(P_C)}')
    dma(52, 8, 10, 4, 16 * 6144, 0)
    tr_addr(8, 64)
    A('s_waitcnt vmcnt(4)')
    silu4(48, 60, 64, 72)
    make_A(72)
    A('s_waitcnt vmcnt(0)')
    stamp(12)
    for blk in range(2):
        for t in range(2): tr_frag(16 + 8 * blk + 4 * t, 8, blk * 2048 + 32 * t, 64)
    A('s_waitcnt lgkmcnt(0)')
    for t in range(2): mfma(80 + 4 * t, 72, 16 + 4 * t)
    for t in range(2): mfma(80 + 4 * t, 76, 24 + 4 * t, 80 + 4 * t)
    red_write([80, 84], 0)
    A('s_barrier')
    A('s_cmp_eq_u32 s3, 0')
    A('s_cbranch_scc0 LMend')
    red_read(60, 0, 0)
    A('s_lshl_b32 s9, s13, 6'); A(f's_add_u32 s9, s9, {MOD2}')
    A('v_add_u32 v6, s9, v0')
    A('s_waitcnt lgkmcnt(0)')
    dpp_reduce([60, 61, 62, 63], [Q1, Q2, HM])
    pack(64, 60, 2)
    A('s_mov_b32 exec_lo, 0x01010101'); A('s_mov_b32 exec_hi, 0x01010101')
    A(f'global_store_dwordx2 v6, v[64:65], {sp(P_WS)} sc1')
    A('LMend:')
    finish()

    A('LroleW:')
    srd(52, P_WO, 4096 * 1024)
    dma_voff(8, 64, 1024)
    A('s_lshl_b32 s10, s5, 19'); A('s_lshl_b32 s9, s3, 16'); A('s_add_u32 s10, s10, s9')
    A('s_lshl_b32 s9, s4, 6'); A('s_add_u32 s10, s10, s9')
    lds_wait(4, 16, 1)
    stamp(11)
    dma(52, 8, 10, 4, 16 * 1024, 0)
    tr_addr(8, 64)
    A('s_lshl_b32 s9, s5, 2'); A('s_lshr_b32 s10, s3, 1'); A('s_add_u32 s9, s9, s10')
    A(f's_mul_i32 s9, s9, {8*OPITCH}'); A(f's_add_u32 s9, s9, {OPART}')
    A('v_and_b32 v5, 3, v0')
    A(f'v_mul_u32_u24 v5, {OPITCH}, v5')
    A('v_add_u32 v5, s9, v5')
    A('v_and_b32 v6, 127, v12')
    A('v_lshl_add_u32 v6, v6, 2, v5')
    A('s_lshl_b32 s9, s5, 11'); A('s_lshl_b32 s10, s4, 7'); A('s_add_u32 s9, s9, s10'); A(f's_add_u32 s9, s9, {YPART}')
    A('v_lshl_add_u32 v4, v0, 1, s9')
    A('s_waitcnt vmcnt(0)')
    stamp(12)
    for blk in range(2):
        for t in range(2): tr_frag(16 + 8 * blk + 4 * t, 8, blk * 2048 + 32 * t, 64)
    l = poll_begin()
    A(f'global_load_dwordx2 v[56:57], v5, {sp(P_WS)} offset:512 sc1')
    A(f'global_load_dwordx2 v[58:59], v5, {sp(P_WS)} offset:{512+4*OPITCH} sc1')
    A(f'global_load_dwordx4 v[48:51], v6, {sp(P_WS)} sc1')
    A(f'global_load_dwordx4 v[52:55], v6, {sp(P_WS)} offset:{4*OPITCH} sc1')
    A('s_waitcnt vmcnt(0)')
    sentinel_check(range(48, 60), 2)
    poll_end_vcc(l)
    stamp(13)
    A('v_max_f32 v2, v56, v58')
    dpp_reduce([2], [Q1, Q2], 'v_max_f32')
    A('v_sub_f32 v56, v56, v2'); A('v_sub_f32 v58, v58, v2')
    A(f'v_mul_f32 v56, {LOG2E}, v56'); A(f'v_mul_f32 v58, {LOG2E}, v58')
    A('v_exp_f32 v56, v56'); A('v_exp_f32 v58, v58')
    A('v_mul_f32 v57, v57, v56')
    for i in range(4): A(f'v_mul_f32 v{48+i}, v{48+i}, v56')
    A('v_fmac_f32 v57, v59, v58')
    for i in range(4): A(f'v_fmac_f32 v{48+i}, v{52+i}, v58')
    dpp_reduce([57, 48, 49, 50, 51], [Q1, Q2])
    A('v_rcp_f32 v57, v57')
    for i in range(4): A(f'v_mul_f32 v{48+i}, v{48+i}, v57')
    pack(72, 48, 2)
    make_A(72)
    A('s_waitcnt lgkmcnt(0)')
    for t in range(2): mfma(80 + 4 * t, 72, 16 + 4 * t)
    for t in range(2): mfma(80 + 4 * t, 76, 24 + 4 * t, 80 + 4 * t)
    red_write([80, 84], 0)
    A('s_barrier')
    A('s_cmp_eq_u32 s3, 0')
    A('s_cbranch_scc0 LWend')
    red_read(60, 0, 0)
    A('s_waitcnt lgkmcnt(0)')
    dpp_reduce([60, 61, 62, 63], [Q1, Q2, HM])
    A('s_mov_b32 exec_lo, 0x01010101'); A('s_mov_b32 exec_hi, 0x01010101')
    A(f'global_store_dwordx4 v4, v[60:63], {sp(P_WS)} sc1')
    A('LWend:')
    finish()

    A('LroleU:')
    A('s_sub_u32 s9, s4, 16')
    A('s_cmp_lt_u32 s5, 3')
    A('s_cselect_b32 s10, 6, 5')
    A('s_cmp_lt_u32 s9, s10')
    A('s_cbranch_scc0 LUend')
    A('s_min_u32 s10, s5, 3'); A('s_mul_i32 s13, s5, 5'); A('s_add_u32 s13, s13, s10'); A('s_add_u32 s13, s13, s9')
    srd(52, P_GATE, 512 * 2752)
    srd(56, P_UP, 512 * 2752)
    dma_voff(8, 64, 2752)
    A(f's_mul_i32 s10, s3, {64*2752}'); A('s_lshl_b32 s9, s13, 6'); A('s_add_u32 s10, s10, s9')
    A('s_mov_b32 s11, s10')
    lds_wait(4, 16, 1)
    stamp(11)
    A(f'global_load_dwordx2 v[56:57], v7, {sp(P_X)}')
    dma(52, 8, 10, 4, 16 * 2752, 0)
    dma(56, 8, 11, 4, 16 * 2752, 4096)
    tr_addr(8, 64)
    A(f'v_add_u32 v5, {MOD2}, v7')
    A('v_and_b32 v6, 3, v0')
    A('v_lshlrev_b32 v6, 11, v6')
    A('v_lshl_add_u32 v6, v12, 2, v6')
    A(f'v_add_u32 v6, {YPART}, v6')
    A('v_add_u32 v9, 8192, v6')
    A('v_lshrrev_b32 v10, 4, v0'); A('s_lshl_b32 s9, s3, 5'); A(f's_add_u32 s9, s9, {LNS}')
    A('v_lshl_add_u32 v10, v10, 3, s9')
    A('v_and_b32 v11, 15, v0'); A('v_lshlrev_b32 v11, 4, v11'); A(f'v_add_u32 v11, {LNS}, v11')
    l = poll_begin()
    A(f'global_load_dwordx2 v[58:59], v5, {sp(P_WS)} sc1')
    A(f'global_load_dwordx2 v[60:61], v5, {sp(P_WS)} offset:1024 sc1')
    A(f'global_load_dwordx2 v[62:63], v5, {sp(P_WS)} offset:2048 sc1')
    A('s_waitcnt vmcnt(0)')
    sentinel_check(range(58, 64), 2)
    poll_end_vcc(l, 1)
    stamp(12)
    for m in range(2):
        for blk in range(2):
            for t in range(2): tr_frag(16 + 16 * blk + 8 * m + 4 * t, 8, 4096 * m + blk * 2048 + 32 * t, 64)
    unpack(96, 56, 2)
    unpack(100, 58, 2)
    unpack(104, 60, 2)
    unpack(108, 62, 2)
    for i in range(4): A(f'v_add_f32 v{108+i}, 1.0, v{108+i}')
    round4(108, 2)
    l = poll_begin()
    A(f'global_load_dwordx4 v[48:51], v6, {sp(P_WS)} sc1')
    A(f'global_load_dwordx4 v[52:55], v9, {sp(P_WS)} sc1')
    A('s_waitcnt vmcnt(0)')
    sentinel_check(range(48, 56), 2)
    poll_end_vcc(l)
    stamp(13)
    for i in range(4): A(f'v_add_f32 v{48+i}, v{48+i}, v{52+i}')
    dpp_reduce([48, 49, 50, 51], [Q1, Q2])
    round4(48, 2)
    for i in range(4): A(f'v_mul_f32 v{48+i}, v{48+i}, v{100+i}')
    round4(48, 2)
    for i in range(4): A(f'v_add_f32 v{48+i}, v{48+i}, v{96+i}')
    pack(56, 48, 2)
    unpack(48, 56, 2)
    A('v_add_f32 v2, v48, v49'); A('v_add_f32 v3, v50, v51'); A('v_add_f32 v2, v2, v3')
    dpp_reduce([2], [R4, R8])
    A('v_mul_f32 v2, 0x3d800000, v2')
    for i in range(4): A(f'v_sub_f32 v{52+i}, v{48+i}, v2')
    A('v_mul_f32 v3, v52, v52')
    for i in range(1, 4): A(f'v_fmac_f32 v3, v{52+i}, v{52+i}')
    dpp_reduce([3], [R4, R8])
    A('ds_write_b64 v10, v[2:3]')
    A('s_cmp_eq_u32 s13, 0')
    A('s_cbranch_scc0 LUnox2')
    A(f'v_add_u32 v5, {X2}, v7')
    A('s_mov_b32 exec_lo, 0x11111111'); A('s_mov_b32 exec_hi, 0x11111111')
    A(f'global_store_dwordx2 v5, v[56:57], {sp(P_WS)} sc1')
    A('s_mov_b64 exec, -1')
    A('LUnox2:')
    A('s_waitcnt lgkmcnt(0)')
    A('s_barrier')
    A('ds_read_b128 v[60:63], v11')
    A('s_waitcnt lgkmcnt(0)')
    A('v_add_f32 v2, v60, v62')
    A('v_add_f32 v3, v61, v63')
    dpp_reduce([2], [R1, R2, R4, R8])
    A('v_mul_f32 v2, 0x3d000000, v2')
    A('v_sub_f32 v60, v60, v2'); A('v_sub_f32 v62, v62, v2')
    A('v_mul_f32 v60, v60, v60'); A('v_fmac_f32 v60, v62, v62')
    A('v_fmac_f32 v3, 0x41800000, v60')
    dpp_reduce([3], [R1, R2, R4, R8])
    A('v_mul_f32 v3, 0x3b000000, v3')
    ln_finish(2, 3)
    ln_norm4(48, 2, 3, 60)
    for i in range(4): A(f'v_mul_f32 v{48+i}, v{48+i}, v{108+i}')
    round4(48, 60)
    for i in range(4): A(f'v_add_f32 v{48+i}, v{48+i}, v{104+i}')
    pack(72, 48, 2)
    make_A(72)
    for t in range(4): mfma(80 + 4 * t, 72, 16 + 4 * t)
    for t in range(4): mfma(80 + 4 * t, 76, 32 + 4 * t, 80 + 4 * t)
    red_write([80, 84, 88, 92], 0)
    A('s_barrier')
    stamp(14)
    A('s_cmp_eq_u32 s3, 0')
    A('s_cbranch_scc0 LUend')
    red_read(60, 0, 0)
    red_read(64, 0, 32)
    A('s_lshl_b32 s9, s13, 6'); A(f's_add_u32 s9, s9, {HH}')
    A('v_add_u32 v6, s9, v0')
    A('s_waitcnt lgkmcnt(0)')
    dpp_reduce(list(range(60, 68)), [Q1, Q2, HM])
    round4(60, 2); round4(64, 4)
    for i in range(4): A(f'v_mul_f32 v{60+i}, v{60+i}, v{64+i}')
    pack(64, 60, 2)
    A(f'v_mov_b32_dpp v66, v64 row_shl:8 {DPP}')
    A(f'v_mov_b32_dpp v67, v65 row_shl:8 {DPP}')
    A('s_mov_b32 exec_lo, 0x00010001'); A('s_mov_b32 exec_hi, 0x00010001')
    A(f'global_store_dwordx4 v6, v[64:67], {sp(P_WS)} sc1')
    A('LUend:')
    finish()
    A('Lexit:')
    A('s_endpgm')
    return A.text()

HEADER = open('cdna_kernels/' + NAME + '.s.ref').read().split('; Override launch')[0]

def full(cfg):
    body = generate(cfg)
    k = NAME + '_kernel'
    return (HEADER +
        f'; @launch grid=(256,1,1) block=(1024,1,1) lds={LDS_TOTAL}\n'
        '.amdgcn_target "amdgcn-amd-amdhsa--gfx950"\n.text\n'
        f'.globl {k}\n.p2align 8\n.type {k},@function\n{k}:\n' + body +
        '.section .rodata,"a"\n.p2align 6\n'
        f'.amdhsa_kernel {k}\n'
        '  .amdhsa_next_free_vgpr 128\n  .amdhsa_next_free_sgpr 102\n  .amdhsa_accum_offset 128\n'
        '  .amdhsa_group_segment_fixed_size 0\n  .amdhsa_kernarg_size 112\n'
        '  .amdhsa_user_sgpr_count 2\n  .amdhsa_user_sgpr_kernarg_segment_ptr 1\n'
        '  .amdhsa_system_sgpr_workgroup_id_x 1\n  .amdhsa_float_denorm_mode_32 3\n'
        '.end_amdhsa_kernel\n')

if __name__ == '__main__':
    out = sys.argv[1]
    kw = {}
    for a in sys.argv[2:]:
        k, v = a.split('=')
        try: v = int(v, 0)
        except ValueError: pass
        kw[k] = v
    open(out, 'w').write(full(Cfg(**kw)))
```

```python
import sys
from asmlib import Asm

NAME = 'adaLN_cond__gqa_block_cached__glu_gated_bilinear__decode'

class Cfg:
    NN = 138
    NF = 98
    kvpol = 'nt'
    wpol = 'nt'
    stamps = False
    span = False
    spin = 1 << 17
    def __init__(self, **kw):
        for k, v in kw.items(): setattr(self, k, v)
        assert 6 * self.NN + 2 * self.NF == 1024
        assert self.NN <= 144 and self.NF <= 144

EPOCH = 0
MODT = 0x1000
QT = 0x4000
SENT = 0x10000
OPART = 0x10000; OPITCH = 640
YPART = 0x38000
MOD2 = 0x3C000
HH = 0x3D000
X2 = 0x3E000
STAMPS = 0x100000
WSTR = 10240
ORED = 81920; ORP = 528
STAT = 90368
QL = 90496
CNT = 90752
RED = 90880; REDP = 272; REDB = 2176
LNS = 95232
LDS_TOTAL = 95744

LOG2E = '0x3fb8aa3b'
SCALE = '0x3db504f3'
EPS = '0x3727c5ac'
DPP = 'row_mask:0xf bank_mask:0xf'

P_X, P_K, P_V, P_WQ, P_WO, P_GATE, P_UP = 16, 18, 20, 22, 24, 28, 30
P_DOWN, P_C, P_WMOD, P_OUT, P_DBG, P_WS = 32, 34, 36, 38, 40, 42
def sp(p): return f's[{p}:{p+1}]'
def vr(a, n): return f'v[{a}:{a+n-1}]' if n > 1 else f'v{a}'

def generate(cfg):
    A = Asm()
    nst = [0]
    def stamp(i):
        if not cfg.stamps: return
        A('s_memrealtime s[98:99]')
        A('s_waitcnt lgkmcnt(0)')
        A(f'v_writelane_b32 v127, s98, {i}')
    def finish():
        if cfg.stamps:
            A('s_mov_b64 exec, -1')
            stamp(31)
            A('s_getreg_b32 s98, hwreg(HW_REG_XCC_ID)')
            A('v_writelane_b32 v127, s98, 30')
            A('s_lshl_b32 s98, s2, 4')
            A('s_add_u32 s98, s98, s3')
            A('s_lshl_b32 s98, s98, 8')
            A(f's_add_u32 s98, s98, {STAMPS}')
            A('v_lshl_add_u32 v126, v0, 2, s98')
            A(f'global_store_dword v126, v127, {sp(P_WS)}')
        if cfg.span:
            A('s_memrealtime s[98:99]')
            A('s_cmp_eq_u32 s3, 0')
            l = A.newlabel('Lspan')
            A(f's_cbranch_scc0 {l}')
            A('s_mov_b64 exec, 1')
            A('s_waitcnt lgkmcnt(0)')
            A('s_not_b32 s96, s96')
            A('v_mov_b32 v2, s96'); A('v_mov_b32 v3, s98'); A('v_mov_b32 v1, 0')
            A(f'global_atomic_umax v1, v2, {sp(P_DBG)}')
            A(f'global_atomic_umax v1, v3, {sp(P_DBG)} offset:4')
            A(f'{l}:')
        A('s_endpgm')

    def srd(r, p, size):
        A(f's_mov_b32 s{r}, s{p}')
        A(f's_mov_b32 s{r+1}, s{p+1}')
        A(f's_mov_b32 s{r+2}, {size}')
        A(f's_mov_b32 s{r+3}, 0x20000')

    def dma_voff(v, WB, RP):
        lpr = WB // 16
        sh = lpr.bit_length() - 1
        A(f'v_lshrrev_b32 v{v}, {sh}, v0')
        A(f'v_mul_u32_u24 v{v}, {RP}, v{v}')
        A(f'v_and_b32 v1, {lpr-1}, v0')
        A(f'v_lshl_add_u32 v{v}, v1, 4, v{v}')

    def dma(srdr, v, soff, n, step, ldsoff):
        for j in range(n):
            A(f's_add_u32 m0, s12, {ldsoff + 1024*j}')
            A(f'buffer_load_dwordx4 v{v}, s[{srdr}:{srdr+3}], s{soff} offen {cfg.wpol} lds')
            if j + 1 < n: A(f's_add_u32 s{soff}, s{soff}, {step}')

    def tr_addr(v, WB):
        A(f'v_lshrrev_b32 v{v}, 4, v0')
        A(f'v_bfe_u32 v1, v0, 2, 2')
        A(f'v_lshl_add_u32 v{v}, v{v}, 3, v1')
        A(f'v_mul_u32_u24 v{v}, {WB}, v{v}')
        A(f'v_and_b32 v1, 3, v0')
        A(f'v_lshl_add_u32 v{v}, v1, 3, v{v}')
        A(f'v_add_u32 v{v}, s12, v{v}')

    def tr_frag(dst, v, off, WB):
        A(f'ds_read_b64_tr_b16 {vr(dst,2)}, v{v} offset:{off}')
        A(f'ds_read_b64_tr_b16 {vr(dst+2,2)}, v{v} offset:{off + 4*WB}')

    def make_A(a):
        for i, sh in enumerate((4, 8, 12)):
            A(f'v_mov_b32_dpp v{a+2+2*i}, v{a} row_shl:{sh} {DPP}')
            A(f'v_mov_b32_dpp v{a+3+2*i}, v{a+1} row_shl:{sh} {DPP}')

    def mfma(d, a, b, c=None):
        cc = vr(c, 4) if c is not None else '0'
        A(f'v_mfma_f32_16x16x32_bf16 {vr(d,4)}, {vr(a,4)}, {vr(b,4)}, {cc}')

    def red_write(ds, buf):
        A('s_mov_b64 exec, 0xffff')
        for t, d in enumerate(ds):
            A(f'ds_write_b32 v13, v{d} offset:{buf*REDB + 64*t}')
        A('s_mov_b64 exec, -1')
        A('s_waitcnt lgkmcnt(0)')

    def red_read(dst, buf, col):
        A(f'ds_read_b128 {vr(dst,4)}, v14 offset:{buf*REDB + 4*col}')

    def dpp_reduce(regs, steps, op='v_add_f32'):
        for st in steps:
            for r in regs:
                A(f'{op}_dpp v{r}, v{r}, v{r} {st} {DPP}')
    Q1, Q2, HM = 'quad_perm:[1,0,3,2]', 'quad_perm:[2,3,0,1]', 'row_half_mirror'
    R1, R2, R4, R8 = 'row_ror:1', 'row_ror:2', 'row_ror:4', 'row_ror:8'

    def unpack(dst, src, n):
        for i in range(n):
            A(f'v_lshlrev_b32 v{dst+2*i}, 16, v{src+i}')
            A(f'v_and_b32 v{dst+2*i+1}, 0xffff0000, v{src+i}')
    def pack(dst, src, n):
        for i in range(n):
            A(f'v_cvt_pk_bf16_f32 v{dst+i}, v{src+2*i}, v{src+2*i+1}')
    def round4(r, t):
        pack(t, r, 2); unpack(r, t, 2)
    def round1(r):
        A(f'v_cvt_pk_bf16_f32 v{r}, v{r}, v{r}')
        A(f'v_and_b32 v{r}, 0xffff0000, v{r}')

    def xrows(r, t, op):
        for pl in ('v_permlane16_swap_b32', 'v_permlane32_swap_b32'):
            A(f'v_mov_b32 v{t}, v{r}')
            A(f'{pl} v{r}, v{t}')
            A(f'{op} v{r}, v{r}, v{t}')

    def silu4(src, f, t, dst):
        unpack(f, src, 2)
        for i in range(4): A(f'v_mul_f32 v{t+i}, 0xbfb8aa3b, v{f+i}')
        for i in range(4): A(f'v_exp_f32 v{t+i}, v{t+i}')
        for i in range(4): A(f'v_add_f32 v{t+i}, 1.0, v{t+i}')
        for i in range(4): A(f'v_rcp_f32 v{t+i}, v{t+i}')
        for i in range(4): A(f'v_mul_f32 v{f+i}, v{f+i}, v{t+i}')
        pack(dst, f, 2)

    def ln_finish(mean, var):
        round1(var)
        round1(mean)
        A(f'v_add_f32 v{var}, {EPS}, v{var}')
        round1(var)
        A(f'v_sqrt_f32 v{var}, v{var}')
        round1(var)
        A(f'v_rcp_f32 v{var}, v{var}')
    def ln_norm4(x, mean, rinv, t):
        for i in range(4): A(f'v_sub_f32 v{x+i}, v{x+i}, v{mean}')
        round4(x, t)
        for i in range(4): A(f'v_mul_f32 v{x+i}, v{x+i}, v{rinv}')
        round4(x, t)

    def poll_begin():
        l = A.newlabel('Lpoll')
        A('s_mov_b32 s15, 0')
        A(f'{l}:')
        return l
    def poll_end_vcc(l, sleep=0):
        done = l + '_ok'
        A(f's_cbranch_vccz {done}')
        A('s_add_u32 s15, s15, 1')
        A(f's_cmp_lt_u32 s15, {cfg.spin}')
        if sleep: A(f's_sleep {sleep}')
        A(f's_cbranch_scc1 {l}')
        A(f'{done}:')
    def sentinel_check(regs, t):
        regs = list(regs)
        first = True
        while regs:
            if first:
                if len(regs) >= 3:
                    A(f'v_max3_u32 v{t}, v{regs[0]}, v{regs[1]}, v{regs[2]}'); regs = regs[3:]
                else:
                    A(f'v_max_u32 v{t}, v{regs[0]}, v{regs[1]}'); regs = regs[2:]
                first = False
            elif len(regs) >= 2:
                A(f'v_max3_u32 v{t}, v{t}, v{regs[0]}, v{regs[1]}'); regs = regs[2:]
            else:
                A(f'v_max_u32 v{t}, v{t}, v{regs[0]}'); regs = regs[1:]
        A(f'v_cmp_eq_u32 vcc, -1, v{t}')
    def lds_wait(off, target, sleep):
        l = A.newlabel('Lw')
        A('s_mov_b32 s15, 0')
        A(f'{l}:')
        A(f'ds_read_b32 v1, v15 offset:{off}')
        A('s_waitcnt lgkmcnt(0)')
        A('v_readfirstlane_b32 s9, v1')
        A(f's_cmp_ge_u32 s9, {target}')
        A(f's_cbranch_scc1 {l}_ok')
        A('s_add_u32 s15, s15, 1')
        A(f's_cmp_lt_u32 s15, {cfg.spin * 4}')
        if sleep is not None: A(f's_sleep {sleep}')
        A(f's_cbranch_scc1 {l}')
        A(f'{l}_ok:')
    def lds_inc(off):
        A('s_mov_b64 exec, 1')
        A('v_mov_b32 v1, 1')
        A(f'ds_add_u32 v15, v1 offset:{off}')
        A('s_mov_b64 exec, -1')

    def l8_consts():
        A(f's_mul_i32 s12, s3, {WSTR}')
        A('v_bfe_u32 v12, v0, 3, 1')
        A('v_lshlrev_b32 v12, 5, v12')
        A('v_lshrrev_b32 v1, 4, v0')
        A('v_lshl_add_u32 v12, v1, 3, v12')
        A('v_and_b32 v1, 4, v0')
        A('s_lshl_b32 s9, s3, 6')
        A('v_add3_u32 v12, v12, v1, s9')
        A(f's_mul_i32 s9, s3, {REDP}')
        A(f's_add_u32 s9, s9, {RED}')
        A('v_lshl_add_u32 v13, v0, 2, s9')
        A('v_and_b32 v14, 7, v0')
        A(f'v_mul_u32_u24 v14, {REDP}, v14')
        A('v_lshrrev_b32 v1, 3, v0')
        A('v_lshl_add_u32 v14, v1, 4, v14')
        A(f'v_add_u32 v14, {RED}, v14')

    A('s_cmp_ge_u32 s2, 256')
    A('s_cbranch_scc1 Lexit')
    A('s_load_dwordx16 s[16:31], s[0:1], 0')
    A('s_load_dwordx8 s[32:39], s[0:1], 64')
    A('s_load_dwordx4 s[40:43], s[0:1], 96')
    if cfg.stamps or cfg.span:
        A('s_memrealtime s[96:97]')
    A('v_lshrrev_b32 v1, 6, v0')
    A('v_and_b32 v0, 63, v0')
    A('v_readfirstlane_b32 s3, v1')
    A(f'v_mov_b32 v15, {CNT}')
    A('v_mov_b32 v2, 0'); A('v_mov_b32 v3, 0'); A('v_mov_b32 v4, 0'); A('v_mov_b32 v5, 0')
    A('s_lshr_b32 s4, s2, 3')
    A('s_and_b32 s5, s2, 7')
    A('s_cmp_lg_u32 s3, 0')
    A('s_cbranch_scc1 Lnoinit')
    A('ds_write_b128 v15, v[2:5]')
    A('Lnoinit:')
    A('s_and_b32 s6, s4, 1')
    A('s_lshl_b32 s6, s6, 1')
    A('s_xor_b32 s6, s6, s5')
    A(f's_mov_b32 s9, {cfg.NN}')
    A('s_cmp_lt_u32 s6, 2')
    A(f's_cselect_b32 s9, {cfg.NF}, s9')
    A(f's_cselect_b32 s10, 0, {2*cfg.NF - 2*cfg.NN}')
    A('s_mul_i32 s11, s6, s9')
    A('s_add_u32 s10, s10, s11')
    A('s_mul_i32 s11, s3, s9')
    A('s_add_u32 s9, s9, s11')
    A('s_lshr_b32 s11, s11, 4')
    A('s_lshr_b32 s9, s9, 4')
    A('s_sub_u32 s8, s9, s11')
    A('s_add_u32 s10, s10, s11')
    A('s_lshl_b32 s10, s10, 10')
    A('s_lshl_b32 s11, s4, 20')
    A('s_add_u32 s10, s10, s11')
    A('s_lshl_b32 s46, s8, 10')
    A('s_mov_b32 s47, 0x20000')
    A('s_mov_b32 s50, s46')
    A('s_mov_b32 s51, 0x20000')
    A('s_mov_b32 s60, 4096')
    A('s_mov_b32 s61, 8192')
    A('v_bfe_u32 v10, v0, 2, 2')
    A('v_lshlrev_b32 v10, 8, v10')
    A('v_lshrrev_b32 v1, 4, v0')
    A('v_lshl_add_u32 v10, v1, 6, v10')
    A('v_and_b32 v1, 3, v0')
    A('v_lshl_add_u32 v10, v1, 4, v10')
    A('v_lshlrev_b32 v11, 4, v0')
    A('s_waitcnt lgkmcnt(0)')
    A(f's_load_dword s7, {sp(P_WS)}, {EPOCH}')
    A(f's_add_u32 s44, s{P_K}, s10')
    A(f's_addc_u32 s45, s{P_K+1}, 0')
    A(f's_add_u32 s48, s{P_V}, s10')
    A(f's_addc_u32 s49, s{P_V+1}, 0')
    if cfg.stamps:
        A('v_mov_b32 v127, 0')
        A('v_writelane_b32 v127, s96, 0')
    A('s_barrier')
    A('s_cmp_lt_u32 s6, 2')
    A('s_cbranch_scc0 Lkv')

    A('s_cmp_lt_u32 s3, 8')
    A('s_cbranch_scc1 Lfront')
    A('s_barrier'); A('s_barrier'); A('s_barrier')
    A('s_branch Lkv')
    A('Lfront:')
    l8_consts()
    A('s_cmp_lt_u32 s3, 4')
    A('s_cbranch_scc0 Lnosent')
    A('s_lshl_b32 s9, s4, 1'); A('s_add_u32 s9, s9, s6')
    A('s_lshl_b32 s9, s9, 2'); A('s_add_u32 s9, s9, s3')
    A('s_lshl_b32 s9, s9, 10'); A(f's_add_u32 s9, s9, {SENT}')
    A('v_add_u32 v6, s9, v11')
    for i in range(4): A(f'v_mov_b32 v{2+i}, -1')
    A(f'global_store_dwordx4 v6, v[2:5], {sp(P_WS)} sc1')
    A('Lnosent:')
    A('v_lshlrev_b32 v7, 1, v12')
    A(f'global_load_dwordx2 v[48:49], v7, {sp(P_C)}')
    A(f'global_load_dwordx4 v[52:55], v11, {sp(P_X)}')
    A(f'global_load_dwordx2 v[50:51], v7, {sp(P_X)}')
    srd(52, P_WMOD, 512 * 6144)
    srd(56, P_WQ, 512 * 8192)
    dma_voff(8, 32, 6144)
    dma_voff(9, 128, 8192)
    A('s_lshl_b32 s13, s5, 4'); A('s_lshr_b32 s9, s4, 1'); A('s_add_u32 s13, s13, s9')
    A(f's_mul_i32 s9, s3, {64*6144}')
    A('s_lshl_b32 s10, s13, 5')
    A('s_add_u32 s10, s10, s9')
    dma(52, 8, 10, 2, 32 * 6144, 8192)
    A(f's_lshl_b32 s10, s3, 19')
    A('s_lshl_b32 s9, s4, 8'); A('s_add_u32 s10, s10, s9')
    A('s_lshl_b32 s9, s6, 7'); A('s_add_u32 s10, s10, s9')
    dma(56, 9, 10, 8, 8 * 8192, 0)
    tr_addr(8, 32)
    tr_addr(9, 128)
    stamp(1)
    A('s_waitcnt vmcnt(10)')
    silu4(48, 60, 64, 72)
    make_A(72)
    unpack(60, 52, 4)
    A('v_add_f32 v2, v60, v61'); A('v_add_f32 v3, v62, v63'); A('v_add_f32 v4, v64, v65'); A('v_add_f32 v5, v66, v67')
    A('v_add_f32 v2, v2, v3'); A('v_add_f32 v4, v4, v5'); A('v_add_f32 v2, v2, v4')
    dpp_reduce([2], [R1, R2, R4, R8])
    xrows(2, 3, 'v_add_f32')
    A('v_mul_f32 v2, 0x3b000000, v2')
    for i in range(8): A(f'v_sub_f32 v{60+i}, v{60+i}, v2')
    A('v_mul_f32 v4, v60, v60')
    for i in range(1, 8): A(f'v_fmac_f32 v4, v{60+i}, v{60+i}')
    dpp_reduce([4], [R1, R2, R4, R8])
    xrows(4, 3, 'v_add_f32')
    A('v_mul_f32 v4, 0x3b000000, v4')
    ln_finish(2, 4)
    unpack(56, 50, 2)
    ln_norm4(56, 2, 4, 60)
    A('s_waitcnt vmcnt(8)')
    stamp(2)
    tr_frag(16, 8, 8192, 32)
    tr_frag(20, 8, 8192 + 32 * 32, 32)
    A('s_waitcnt lgkmcnt(0)')
    mfma(80, 72, 16)
    mfma(80, 76, 20, 80)
    red_write([80], 0)
    A('s_barrier')
    A('s_add_u32 s7, s7, 1')
    A('s_cmp_eq_u32 s3, 0')
    A('s_cbranch_scc0 Lf1done')
    red_read(60, 0, 0)
    A('s_waitcnt lgkmcnt(0)')
    dpp_reduce([60, 61, 62, 63], [Q1, Q2, HM])
    A('v_cvt_pk_bf16_f32 v64, v60, v61'); A('v_mov_b32 v65, s7')
    A('v_cvt_pk_bf16_f32 v66, v62, v63'); A('v_mov_b32 v67, s7')
    A('s_lshl_b32 s9, s13, 6'); A(f's_add_u32 s9, s9, {MODT}')
    A('v_lshl_add_u32 v6, v0, 1, s9')
    A('s_mov_b64 exec, 0x01010101')
    A(f'global_store_dwordx4 v6, v[64:67], {sp(P_WS)} sc1')
    A('s_mov_b64 exec, -1')
    A('Lf1done:')
    stamp(3)
    A(f'v_mov_b32 v6, {MODT}')
    A('v_lshl_add_u32 v6, v12, 2, v6')
    l = poll_begin()
    A(f'global_load_dwordx4 v[60:63], v6, {sp(P_WS)} sc1')
    A(f'global_load_dwordx4 v[68:71], v6, {sp(P_WS)} offset:2048 sc1')
    A('s_waitcnt vmcnt(0)')
    A('v_xor_b32 v2, s7, v61'); A('v_xor_b32 v3, s7, v63'); A('v_xor_b32 v4, s7, v69'); A('v_xor_b32 v5, s7, v71')
    A('v_or3_b32 v2, v2, v3, v4'); A('v_or_b32 v2, v2, v5')
    A('v_cmp_ne_u32 vcc, 0, v2')
    poll_end_vcc(l, 1)
    stamp(4)
    for blk in range(2):
        for t in range(4):
            tr_frag(16 + 16 * blk + 4 * t, 9, blk * 32 * 128 + 32 * t, 128)
    A('v_mov_b32 v61, v62'); A('v_mov_b32 v69, v70')
    unpack(64, 68, 2)
    for i in range(4): A(f'v_add_f32 v{64+i}, 1.0, v{64+i}')
    round4(64, 2)
    for i in range(4): A(f'v_mul_f32 v{56+i}, v{56+i}, v{64+i}')
    round4(56, 2)
    unpack(64, 60, 2)
    for i in range(4): A(f'v_add_f32 v{56+i}, v{56+i}, v{64+i}')
    pack(72, 56, 2)
    make_A(72)
    A('s_waitcnt lgkmcnt(0)')
    for t in range(4): mfma(80 + 4 * t, 72, 16 + 4 * t)
    for t in range(4): mfma(80 + 4 * t, 76, 32 + 4 * t, 80 + 4 * t)
    red_write([80, 84, 88, 92], 1)
    A('s_barrier')
    A('s_cmp_lt_u32 s3, 2')
    A('s_cbranch_scc0 Lf2done')
    A('s_lshl_b32 s9, s3, 7')
    A('v_add_u32 v14, s9, v14')
    red_read(60, 1, 0)
    A('s_waitcnt lgkmcnt(0)')
    dpp_reduce([60, 61, 62, 63], [Q1, Q2, HM])
    A('v_cvt_pk_bf16_f32 v64, v60, v61'); A('v_mov_b32 v65, s7')
    A('v_cvt_pk_bf16_f32 v66, v62, v63'); A('v_mov_b32 v67, s7')
    A('s_lshl_b32 s10, s4, 9'); A('s_add_u32 s9, s9, s10')
    A('s_lshl_b32 s10, s6, 8'); A('s_add_u32 s9, s9, s10')
    A(f's_add_u32 s9, s9, {QT}')
    A('v_lshl_add_u32 v6, v0, 1, s9')
    A('s_mov_b32 exec_lo, 0x01010101'); A('s_mov_b32 exec_hi, 0x01010101')
    A(f'global_store_dwordx4 v6, v[64:67], {sp(P_WS)} sc1')
    A('s_mov_b64 exec, -1')
    A('Lf2done:')
    A('s_sub_u32 s7, s7, 1')
    A('s_barrier')
    stamp(5)

    A('Lkv:')
    KB, VB = 16, 52
    for base, srdr, v in ((KB, 44, 10), (VB, 48, 11)):
        for j in range(9):
            so = ('0', 's60', 's61')[j >> 2]
            A(f'buffer_load_dwordx4 {vr(base+4*j,4)}, v{v}, s[{srdr}:{srdr+3}], {so} offen offset:{1024*(j&3)} {cfg.kvpol}')
    lds_inc(4)
    stamp(6)
    A('s_waitcnt lgkmcnt(0)')
    A('s_add_u32 s7, s7, 1')
    A('s_cmp_lt_u32 s3, 4')
    A('s_cbranch_scc0 Lqwait')
    A('s_lshl_b32 s9, s4, 9'); A('s_lshl_b32 s10, s3, 7'); A('s_add_u32 s9, s9, s10'); A(f's_add_u32 s9, s9, {QT}')
    A(f's_add_u32 s10, s{P_WS}, s9'); A(f's_addc_u32 s11, s{P_WS+1}, 0')
    A('s_mov_b32 s15, 0')
    A('Lqpoll:')
    A('s_load_dwordx16 s[64:79], s[10:11], 0 glc')
    A('s_load_dwordx16 s[80:95], s[10:11], 64 glc')
    A('s_waitcnt lgkmcnt(0)')
    A('s_xor_b32 s9, s65, s7')
    for i in range(1, 16):
        A(f's_xor_b32 s13, s{65+2*i}, s7')
        A('s_or_b32 s9, s9, s13')
    A('s_cbranch_scc0 Lqgot')
    A('s_add_u32 s15, s15, 1')
    A(f's_cmp_lt_u32 s15, {cfg.spin}')
    A('s_sleep 2')
    A('s_cbranch_scc1 Lqpoll')
    A('Lqgot:')
    for i in range(16): A(f'v_writelane_b32 v1, s{64+2*i}, {i}')
    A('s_lshl_b32 s9, s3, 6'); A(f's_add_u32 s9, s9, {QL}')
    A('v_lshl_add_u32 v2, v0, 2, s9')
    A('s_mov_b64 exec, 0xffff')
    A('ds_write_b32 v2, v1')
    A('s_waitcnt lgkmcnt(0)')
    lds_inc(0)
    A('Lqwait:')
    A('v_and_b32 v2, 1, v0')
    A('v_lshlrev_b32 v2, 4, v2')
    A('v_mov_b32 v3, 0xffff')
    A('v_lshlrev_b32 v3, v2, v3')
    A('v_bfe_u32 v2, v0, 1, 2')
    for wv in range(4):
        A(f'v_cmp_eq_u32 vcc, {wv}, v2')
        A(f'v_cndmask_b32 v{104+wv}, 0, v3, vcc')
    A('v_lshrrev_b32 v8, 4, v0')
    A('v_and_b32 v1, 3, v0')
    A('v_lshl_add_u32 v8, v8, 2, v1')
    A('v_lshlrev_b32 v8, 4, v8')
    A('v_bfe_u32 v9, v0, 2, 2')
    A('s_mov_b32 s62, 0xaaaaaaaa'); A('s_mov_b32 s63, 0xaaaaaaaa')
    A('s_mov_b32 s52, 0xcccccccc'); A('s_mov_b32 s53, 0xcccccccc')
    lds_wait(0, 4, 2)
    stamp(7)
    A(f'v_add_u32 v8, {QL}, v8')
    A('ds_read_b128 v[4:7], v8')
    A('s_waitcnt lgkmcnt(0)')
    for u in range(4):
        A(f'v_cmp_eq_u32 vcc, {u}, v9')
        for i in range(4): A(f'v_cndmask_b32 v{88+4*u+i}, 0, v{4+i}, vcc')
    for G in range(3):
        for u in range(4 if G < 2 else 1):
            j = 4 * G + u
            A(f's_waitcnt vmcnt({17-j})')
            mfma(108 + 4 * G, KB + 4 * j, 88 + 4 * u, None if u == 0 else 108 + 4 * G)
    stamp(8)
    for G in range(3):
        d = 108 + 4 * G
        A(f'v_cndmask_b32 v{d}, v{d}, v{d+1}, s[62:63]')
        A(f'v_cndmask_b32 v{d+2}, v{d+2}, v{d+3}, s[62:63]')
    for G in range(3):
        d = 108 + 4 * G
        A(f'v_cndmask_b32 v{2+G}, v{d}, v{d+2}, s[52:53]')
    dpp_reduce([2, 3, 4], [Q1, Q2])
    A('v_cvt_pk_bf16_f32 v5, v2, v3'); A('v_cvt_pk_bf16_f32 v6, v4, v4')
    A('v_lshlrev_b32 v2, 16, v5'); A('v_and_b32 v3, 0xffff0000, v5'); A('v_lshlrev_b32 v4, 16, v6')
    for G in range(3): A(f'v_mul_f32 v{2+G}, {SCALE}, v{2+G}')
    A('v_cvt_pk_bf16_f32 v5, v2, v3'); A('v_cvt_pk_bf16_f32 v6, v4, v4')
    A('v_lshlrev_b32 v2, 16, v5'); A('v_and_b32 v3, 0xffff0000, v5'); A('v_lshlrev_b32 v4, 16, v6')
    A('v_mov_b32 v7, 0xff800000')
    for G in range(3):
        A(f's_sub_i32 s9, s8, {4*G}')
        A(f'v_cmp_gt_i32 vcc, s9, v9')
        A(f'v_cndmask_b32 v{2+G}, v7, v{2+G}, vcc')
    A('v_max3_f32 v124, v2, v3, v4')
    A('v_max_f32 v124, 0xff7fffff, v124')
    dpp_reduce([124], [R4, R8], 'v_max_f32')
    xrows(124, 5, 'v_max_f32')
    for G in range(3): A(f'v_sub_f32 v{2+G}, v{2+G}, v124')
    for G in range(3): A(f'v_mul_f32 v{2+G}, {LOG2E}, v{2+G}')
    for G in range(3): A(f'v_exp_f32 v{2+G}, v{2+G}')
    A('v_add_f32 v125, v2, v3')
    for G in range(3): A(f'v_cvt_pk_bf16_f32 v{5+G}, v{2+G}, v{2+G}')
    A('v_add_f32 v125, v125, v4')
    dpp_reduce([125], [R4, R8])
    xrows(125, 1, 'v_add_f32')
    A(f's_mul_i32 s9, s3, {ORP}'); A(f's_add_u32 s9, s9, {ORED}')
    A('v_and_b32 v2, 15, v0'); A('v_lshlrev_b32 v2, 5, v2')
    A('v_and_b32 v3, 16, v0')
    A('v_add3_u32 v2, v2, v3, s9')
    A('s_lshl_b32 s9, s3, 3'); A(f's_add_u32 s9, s9, {STAT}')
    A('v_mov_b32 v3, s9')
    A('ds_write_b64 v3, v[124:125]')
    def a_set(j):
        G, u = j >> 2, j & 3
        for i in range(4):
            A(f'v_and_b32_dpp v{88+4*(j&3)+i}, v{5+G}, v{104+i} row_newbcast:{4*u} {DPP}')
    a_set(0); a_set(1)
    for j in range(9):
        if j + 2 < 9: a_set(j + 2)
        A(f's_waitcnt vmcnt({8-j})')
        mfma(120, 88 + 4 * (j & 3), VB + 4 * j, None if j == 0 else 120)
    A('s_mov_b32 exec_hi, 0')
    A('ds_write_b128 v2, v[120:123]')
    A('s_waitcnt lgkmcnt(0)')
    lds_inc(8)
    stamp(9)
    A('s_cmp_lt_u32 s3, 8')
    A('s_cbranch_scc1 Ltail')

    A('v_and_b32 v2, 15, v0')
    A('v_lshlrev_b32 v3, 3, v2')
    A(f'v_add_u32 v3, {STAT}, v3')
    A(f'v_mul_u32_u24 v2, {ORP}, v2')
    A('v_and_b32 v4, 48, v0')
    A('s_sub_u32 s10, s3, 8'); A('s_lshl_b32 s10, s10, 6')
    A(f's_add_u32 s9, s10, {ORED}')
    A('v_add3_u32 v2, v2, v4, s9')
    A(f's_mul_i32 s11, s2, {OPITCH}'); A(f's_add_u32 s11, s11, {OPART}')
    A('s_add_u32 s10, s10, s11')
    A('v_add_u32 v4, s10, v4')
    A('v_mov_b32 v5, s11')
    lds_wait(8, 16, None)
    stamp(10)
    A('ds_read_b64 v[16:17], v3')
    A('ds_read_b128 v[20:23], v2')
    A('s_waitcnt lgkmcnt(1)')
    A('v_mov_b32 v18, v16')
    dpp_reduce([18], [R1, R2, R4, R8], 'v_max_f32')
    A('v_sub_f32 v16, v16, v18')
    A(f'v_mul_f32 v16, {LOG2E}, v16')
    A('v_exp_f32 v16, v16')
    A('s_waitcnt lgkmcnt(0)')
    A('v_mul_f32 v19, v17, v16')
    for i in range(4): A(f'v_mul_f32 v{20+i}, v{20+i}, v16')
    dpp_reduce([20, 21, 22, 23, 19], [R1, R2, R4, R8])
    A('s_mov_b32 exec_lo, 0x00010001'); A('s_mov_b32 exec_hi, 0x00010001')
    A(f'global_store_dwordx4 v4, v[20:23], {sp(P_WS)} sc1')
    A('s_cmp_eq_u32 s3, 8')
    A('s_cbranch_scc0 Lcombdone')
    A('s_mov_b64 exec, 1')
    A(f'global_store_dwordx2 v5, v[18:19], {sp(P_WS)} offset:512 sc1')
    A('Lcombdone:')
    finish()

    A('Ltail:')
    l8_consts()
    A('v_lshlrev_b32 v7, 1, v12')
    A('s_cmp_lt_u32 s4, 16')
    A('s_cbranch_scc1 LroleW')
    A('s_cmp_lt_u32 s4, 22')
    A('s_cbranch_scc1 LroleU')
    A('s_cmp_lt_u32 s4, 28')
    A('s_cbranch_scc1 LroleM')

    A('s_lshl_b32 s13, s5, 2'); A('s_add_u32 s13, s13, s4'); A('s_sub_u32 s13, s13, 28')
    srd(52, P_DOWN, 1376 * 1024)
    srd(56, P_WMOD, 512 * 6144)
    dma_voff(8, 32, 1024)
    dma_voff(9, 32, 6144)
    A('s_lshl_b32 s10, s3, 15'); A('s_lshl_b32 s9, s13, 5'); A('s_add_u32 s10, s10, s9')
    A(f's_mul_i32 s11, s3, {64*6144}'); A('s_add_u32 s11, s11, s9'); A(f's_add_u32 s11, s11, {2560*2}')
    lds_wait(4, 16, 1)
    stamp(11)
    A(f'global_load_dwordx2 v[48:49], v7, {sp(P_C)}')
    dma(56, 9, 11, 2, 32 * 6144, 6144)
    dma(52, 8, 10, 6, 8 * 32 * 1024, 0)
    tr_addr(8, 32)
    A('s_waitcnt vmcnt(8)')
    silu4(48, 60, 64, 72)
    make_A(72)
    A('s_waitcnt vmcnt(6)')
    tr_frag(16, 8, 6144, 32); tr_frag(20, 8, 6144 + 1024, 32)
    A('s_waitcnt lgkmcnt(0)')
    mfma(80, 72, 16); mfma(80, 76, 20, 80)
    red_write([80], 0)
    A('s_waitcnt vmcnt(0)')
    stamp(12)
    for j in range(6): tr_frag(16 + 4 * j, 8, 1024 * j, 32)
    A('s_barrier')
    A('v_and_b32 v6, 48, v0')
    A('s_lshl_b32 s9, s3, 6'); A(f's_add_u32 s9, s9, {HH}')
    A('v_add_u32 v6, s9, v6')
    A('s_cmp_lt_u32 s3, 3')
    A('s_cselect_b32 s9, 2560, 0')
    A('v_add_u32 v5, s9, v6')
    A('s_cmp_eq_u32 s3, 0')
    A('s_cbranch_scc0 LDnogb')
    red_read(96, 0, 0)
    A('v_and_b32 v4, 24, v0')
    A('s_lshl_b32 s9, s13, 5')
    A('v_add_u32 v4, s9, v4')
    A(f'v_add_u32 v3, {X2}, v4')
    A('s_waitcnt lgkmcnt(0)')
    dpp_reduce([96, 97, 98, 99], [Q1, Q2, HM])
    round4(96, 100)
    l = poll_begin()
    A(f'global_load_dwordx2 v[104:105], v3, {sp(P_WS)} sc1')
    A('s_waitcnt vmcnt(0)')
    sentinel_check([104, 105], 2)
    poll_end_vcc(l, 1)
    unpack(100, 104, 2)
    A('LDnogb:')
    stamp(13)
    l = poll_begin()
    for j in range(5):
        A(f'global_load_dwordx4 {vr(48+4*j,4)}, v6, {sp(P_WS)} offset:{512*j} sc1')
    A(f'global_load_dwordx4 v[68:71], v5, {sp(P_WS)} sc1')
    A('s_waitcnt vmcnt(0)')
    sentinel_check(range(48, 72), 2)
    poll_end_vcc(l)
    stamp(14)
    A('s_waitcnt lgkmcnt(0)')
    for j in range(6): mfma(80, 48 + 4 * j, 16 + 4 * j, None if j == 0 else 80)
    red_write([80], 1)
    A('s_barrier')
    A('s_cmp_eq_u32 s3, 0')
    A('s_cbranch_scc0 LDend')
    red_read(60, 1, 0)
    A('s_waitcnt lgkmcnt(0)')
    dpp_reduce([60, 61, 62, 63], [Q1, Q2, HM])
    round4(60, 64)
    for i in range(4): A(f'v_mul_f32 v{60+i}, v{60+i}, v{96+i}')
    round4(60, 64)
    for i in range(4): A(f'v_add_f32 v{60+i}, v{60+i}, v{100+i}')
    pack(64, 60, 2)
    A('s_mov_b64 exec, 0x01010101')
    A(f'global_store_dwordx2 v4, v[64:65], {sp(P_OUT)}')
    A('s_cmp_eq_u32 s13, 0')
    A('s_cbranch_scc0 LDend')
    A('s_mov_b64 exec, 1')
    A('v_mov_b32 v2, 0'); A('v_mov_b32 v3, s7')
    A(f'global_store_dword v2, v3, {sp(P_WS)} offset:{EPOCH} sc1')
    A('LDend:')
    finish()

    A('LroleM:')
    A('s_mul_i32 s13, s5, 6'); A('s_add_u32 s13, s13, s4'); A('s_sub_u32 s13, s13, 22')
    srd(52, P_WMOD, 512 * 6144)
    dma_voff(8, 64, 6144)
    A(f's_mul_i32 s10, s3, {64*6144}'); A('s_lshl_b32 s9, s13, 6'); A('s_add_u32 s10, s10, s9'); A('s_add_u32 s10, s10, 2048')
    lds_wait(4, 16, 1)
    stamp(11)
    A(f'global_load_dwordx2 v[48:49], v7, {sp(P_C)}')
    dma(52, 8, 10, 4, 16 * 6144, 0)
    tr_addr(8, 64)
    A('s_waitcnt vmcnt(4)')
    silu4(48, 60, 64, 72)
    make_A(72)
    A('s_waitcnt vmcnt(0)')
    stamp(12)
    for blk in range(2):
        for t in range(2): tr_frag(16 + 8 * blk + 4 * t, 8, blk * 2048 + 32 * t, 64)
    A('s_waitcnt lgkmcnt(0)')
    for t in range(2): mfma(80 + 4 * t, 72, 16 + 4 * t)
    for t in range(2): mfma(80 + 4 * t, 76, 24 + 4 * t, 80 + 4 * t)
    red_write([80, 84], 0)
    A('s_barrier')
    A('s_cmp_eq_u32 s3, 0')
    A('s_cbranch_scc0 LMend')
    red_read(60, 0, 0)
    A('s_lshl_b32 s9, s13, 6'); A(f's_add_u32 s9, s9, {MOD2}')
    A('v_add_u32 v6, s9, v0')
    A('s_waitcnt lgkmcnt(0)')
    dpp_reduce([60, 61, 62, 63], [Q1, Q2, HM])
    pack(64, 60, 2)
    A('s_mov_b32 exec_lo, 0x01010101'); A('s_mov_b32 exec_hi, 0x01010101')
    A(f'global_store_dwordx2 v6, v[64:65], {sp(P_WS)} sc1')
    A('LMend:')
    finish()

    A('LroleW:')
    srd(52, P_WO, 4096 * 1024)
    dma_voff(8, 64, 1024)
    A('s_lshl_b32 s10, s5, 19'); A('s_lshl_b32 s9, s3, 16'); A('s_add_u32 s10, s10, s9')
    A('s_lshl_b32 s9, s4, 6'); A('s_add_u32 s10, s10, s9')
    lds_wait(4, 16, 1)
    stamp(11)
    dma(52, 8, 10, 4, 16 * 1024, 0)
    tr_addr(8, 64)
    A('s_lshl_b32 s9, s5, 2'); A('s_lshr_b32 s10, s3, 1'); A('s_add_u32 s9, s9, s10')
    A(f's_mul_i32 s9, s9, {8*OPITCH}'); A(f's_add_u32 s9, s9, {OPART}')
    A('v_and_b32 v5, 3, v0')
    A(f'v_mul_u32_u24 v5, {OPITCH}, v5')
    A('v_add_u32 v5, s9, v5')
    A('v_and_b32 v6, 127, v12')
    A('v_lshl_add_u32 v6, v6, 2, v5')
    A('s_lshl_b32 s9, s5, 11'); A('s_lshl_b32 s10, s4, 7'); A('s_add_u32 s9, s9, s10'); A(f's_add_u32 s9, s9, {YPART}')
    A('v_lshl_add_u32 v4, v0, 1, s9')
    A('s_waitcnt vmcnt(0)')
    stamp(12)
    for blk in range(2):
        for t in range(2): tr_frag(16 + 8 * blk + 4 * t, 8, blk * 2048 + 32 * t, 64)
    l = poll_begin()
    A(f'global_load_dwordx2 v[56:57], v5, {sp(P_WS)} offset:512 sc1')
    A(f'global_load_dwordx2 v[58:59], v5, {sp(P_WS)} offset:{512+4*OPITCH} sc1')
    A(f'global_load_dwordx4 v[48:51], v6, {sp(P_WS)} sc1')
    A(f'global_load_dwordx4 v[52:55], v6, {sp(P_WS)} offset:{4*OPITCH} sc1')
    A('s_waitcnt vmcnt(0)')
    sentinel_check(range(48, 60), 2)
    poll_end_vcc(l)
    stamp(13)
    A('v_max_f32 v2, v56, v58')
    dpp_reduce([2], [Q1, Q2], 'v_max_f32')
    A('v_sub_f32 v56, v56, v2'); A('v_sub_f32 v58, v58, v2')
    A(f'v_mul_f32 v56, {LOG2E}, v56'); A(f'v_mul_f32 v58, {LOG2E}, v58')
    A('v_exp_f32 v56, v56'); A('v_exp_f32 v58, v58')
    A('v_mul_f32 v57, v57, v56')
    for i in range(4): A(f'v_mul_f32 v{48+i}, v{48+i}, v56')
    A('v_fmac_f32 v57, v59, v58')
    for i in range(4): A(f'v_fmac_f32 v{48+i}, v{52+i}, v58')
    dpp_reduce([57, 48, 49, 50, 51], [Q1, Q2])
    A('v_rcp_f32 v57, v57')
    for i in range(4): A(f'v_mul_f32 v{48+i}, v{48+i}, v57')
    pack(72, 48, 2)
    make_A(72)
    A('s_waitcnt lgkmcnt(0)')
    for t in range(2): mfma(80 + 4 * t, 72, 16 + 4 * t)
    for t in range(2): mfma(80 + 4 * t, 76, 24 + 4 * t, 80 + 4 * t)
    red_write([80, 84], 0)
    A('s_barrier')
    A('s_cmp_eq_u32 s3, 0')
    A('s_cbranch_scc0 LWend')
    red_read(60, 0, 0)
    A('s_waitcnt lgkmcnt(0)')
    dpp_reduce([60, 61, 62, 63], [Q1, Q2, HM])
    A('s_mov_b32 exec_lo, 0x01010101'); A('s_mov_b32 exec_hi, 0x01010101')
    A(f'global_store_dwordx4 v4, v[60:63], {sp(P_WS)} sc1')
    A('LWend:')
    finish()

    A('LroleU:')
    A('s_sub_u32 s9, s4, 16')
    A('s_cmp_lt_u32 s5, 3')
    A('s_cselect_b32 s10, 6, 5')
    A('s_cmp_lt_u32 s9, s10')
    A('s_cbranch_scc0 LUend')
    A('s_min_u32 s10, s5, 3'); A('s_mul_i32 s13, s5, 5'); A('s_add_u32 s13, s13, s10'); A('s_add_u32 s13, s13, s9')
    srd(52, P_GATE, 512 * 2752)
    srd(56, P_UP, 512 * 2752)
    dma_voff(8, 64, 2752)
    A(f's_mul_i32 s10, s3, {64*2752}'); A('s_lshl_b32 s9, s13, 6'); A('s_add_u32 s10, s10, s9')
    A('s_mov_b32 s11, s10')
    lds_wait(4, 16, 1)
    stamp(11)
    A(f'global_load_dwordx2 v[56:57], v7, {sp(P_X)}')
    dma(52, 8, 10, 4, 16 * 2752, 0)
    dma(56, 8, 11, 4, 16 * 2752, 4096)
    tr_addr(8, 64)
    A(f'v_add_u32 v5, {MOD2}, v7')
    A('v_and_b32 v6, 3, v0')
    A('v_lshlrev_b32 v6, 11, v6')
    A('v_lshl_add_u32 v6, v12, 2, v6')
    A(f'v_add_u32 v6, {YPART}, v6')
    A('v_add_u32 v9, 8192, v6')
    A('v_lshrrev_b32 v10, 4, v0'); A('s_lshl_b32 s9, s3, 5'); A(f's_add_u32 s9, s9, {LNS}')
    A('v_lshl_add_u32 v10, v10, 3, s9')
    A('v_and_b32 v11, 15, v0'); A('v_lshlrev_b32 v11, 4, v11'); A(f'v_add_u32 v11, {LNS}, v11')
    l = poll_begin()
    A(f'global_load_dwordx2 v[58:59], v5, {sp(P_WS)} sc1')
    A(f'global_load_dwordx2 v[60:61], v5, {sp(P_WS)} offset:1024 sc1')
    A(f'global_load_dwordx2 v[62:63], v5, {sp(P_WS)} offset:2048 sc1')
    A('s_waitcnt vmcnt(0)')
    sentinel_check(range(58, 64), 2)
    poll_end_vcc(l, 1)
    stamp(12)
    for m in range(2):
        for blk in range(2):
            for t in range(2): tr_frag(16 + 16 * blk + 8 * m + 4 * t, 8, 4096 * m + blk * 2048 + 32 * t, 64)
    unpack(96, 56, 2)
    unpack(100, 58, 2)
    unpack(104, 60, 2)
    unpack(108, 62, 2)
    for i in range(4): A(f'v_add_f32 v{108+i}, 1.0, v{108+i}')
    round4(108, 2)
    l = poll_begin()
    A(f'global_load_dwordx4 v[48:51], v6, {sp(P_WS)} sc1')
    A(f'global_load_dwordx4 v[52:55], v9, {sp(P_WS)} sc1')
    A('s_waitcnt vmcnt(0)')
    sentinel_check(range(48, 56), 2)
    poll_end_vcc(l)
    stamp(13)
    for i in range(4): A(f'v_add_f32 v{48+i}, v{48+i}, v{52+i}')
    dpp_reduce([48, 49, 50, 51], [Q1, Q2])
    round4(48, 2)
    for i in range(4): A(f'v_mul_f32 v{48+i}, v{48+i}, v{100+i}')
    round4(48, 2)
    for i in range(4): A(f'v_add_f32 v{48+i}, v{48+i}, v{96+i}')
    pack(56, 48, 2)
    unpack(48, 56, 2)
    A('v_add_f32 v2, v48, v49'); A('v_add_f32 v3, v50, v51'); A('v_add_f32 v2, v2, v3')
    dpp_reduce([2], [R4, R8])
    A('v_mul_f32 v2, 0x3d800000, v2')
    for i in range(4): A(f'v_sub_f32 v{52+i}, v{48+i}, v2')
    A('v_mul_f32 v3, v52, v52')
    for i in range(1, 4): A(f'v_fmac_f32 v3, v{52+i}, v{52+i}')
    dpp_reduce([3], [R4, R8])
    A('ds_write_b64 v10, v[2:3]')
    A('s_cmp_eq_u32 s13, 0')
    A('s_cbranch_scc0 LUnox2')
    A(f'v_add_u32 v5, {X2}, v7')
    A('s_mov_b32 exec_lo, 0x11111111'); A('s_mov_b32 exec_hi, 0x11111111')
    A(f'global_store_dwordx2 v5, v[56:57], {sp(P_WS)} sc1')
    A('s_mov_b64 exec, -1')
    A('LUnox2:')
    A('s_waitcnt lgkmcnt(0)')
    A('s_barrier')
    A('ds_read_b128 v[60:63], v11')
    A('s_waitcnt lgkmcnt(0)')
    A('v_add_f32 v2, v60, v62')
    A('v_add_f32 v3, v61, v63')
    dpp_reduce([2], [R1, R2, R4, R8])
    A('v_mul_f32 v2, 0x3d000000, v2')
    A('v_sub_f32 v60, v60, v2'); A('v_sub_f32 v62, v62, v2')
    A('v_mul_f32 v60, v60, v60'); A('v_fmac_f32 v60, v62, v62')
    A('v_fmac_f32 v3, 0x41800000, v60')
    dpp_reduce([3], [R1, R2, R4, R8])
    A('v_mul_f32 v3, 0x3b000000, v3')
    ln_finish(2, 3)
    ln_norm4(48, 2, 3, 60)
    for i in range(4): A(f'v_mul_f32 v{48+i}, v{48+i}, v{108+i}')
    round4(48, 60)
    for i in range(4): A(f'v_add_f32 v{48+i}, v{48+i}, v{104+i}')
    pack(72, 48, 2)
    make_A(72)
    for t in range(4): mfma(80 + 4 * t, 72, 16 + 4 * t)
    for t in range(4): mfma(80 + 4 * t, 76, 32 + 4 * t, 80 + 4 * t)
    red_write([80, 84, 88, 92], 0)
    A('s_barrier')
    stamp(14)
    A('s_cmp_eq_u32 s3, 0')
    A('s_cbranch_scc0 LUend')
    red_read(60, 0, 0)
    red_read(64, 0, 32)
    A('s_lshl_b32 s9, s13, 6'); A(f's_add_u32 s9, s9, {HH}')
    A('v_add_u32 v6, s9, v0')
    A('s_waitcnt lgkmcnt(0)')
    dpp_reduce(list(range(60, 68)), [Q1, Q2, HM])
    round4(60, 2); round4(64, 4)
    for i in range(4): A(f'v_mul_f32 v{60+i}, v{60+i}, v{64+i}')
    pack(64, 60, 2)
    A(f'v_mov_b32_dpp v66, v64 row_shl:8 {DPP}')
    A(f'v_mov_b32_dpp v67, v65 row_shl:8 {DPP}')
    A('s_mov_b32 exec_lo, 0x00010001'); A('s_mov_b32 exec_hi, 0x00010001')
    A(f'global_store_dwordx4 v6, v[64:67], {sp(P_WS)} sc1')
    A('LUend:')
    finish()
    A('Lexit:')
    A('s_endpgm')
    return A.text()

HEADER = open('cdna_kernels/' + NAME + '.s.ref').read().split('; Override launch')[0]

def full(cfg):
    body = generate(cfg)
    k = NAME + '_kernel'
    return (HEADER +
        f'; @launch grid=(256,1,1) block=(1024,1,1) lds={LDS_TOTAL}\n'
        '.amdgcn_target "amdgcn-amd-amdhsa--gfx950"\n.text\n'
        f'.globl {k}\n.p2align 8\n.type {k},@function\n{k}:\n' + body +
        '.section .rodata,"a"\n.p2align 6\n'
        f'.amdhsa_kernel {k}\n'
        '  .amdhsa_next_free_vgpr 128\n  .amdhsa_next_free_sgpr 102\n  .amdhsa_accum_offset 128\n'
        '  .amdhsa_group_segment_fixed_size 0\n  .amdhsa_kernarg_size 112\n'
        '  .amdhsa_user_sgpr_count 2\n  .amdhsa_user_sgpr_kernarg_segment_ptr 1\n'
        '  .amdhsa_system_sgpr_workgroup_id_x 1\n  .amdhsa_float_denorm_mode_32 3\n'
        '.end_amdhsa_kernel\n')

if __name__ == '__main__':
    out = sys.argv[1]
    kw = {}
    for a in sys.argv[2:]:
        k, v = a.split('=')
        try: v = int(v, 0)
        except ValueError: pass
        kw[k] = v
    open(out, 'w').write(full(Cfg(**kw)))
```

```python
import sys
from asmlib import Asm

NAME = 'adaLN_cond__gqa_block_cached__glu_gated_bilinear__decode'

class Cfg:
    NN = 138
    NF = 98
    kvpol = 'nt'
    wpol = 'nt'
    stamps = False
    span = False
    fixspan = 0
    spin = 1 << 17
    def __init__(self, **kw):
        for k, v in kw.items(): setattr(self, k, v)
        assert 6 * self.NN + 2 * self.NF == 1024
        assert self.NN <= 144 and self.NF <= 144

EPOCH = 0
MODT = 0x1000
QT = 0x4000
SENT = 0x10000
OPART = 0x10000; OPITCH = 640
YPART = 0x38000
MOD2 = 0x3C000
HH = 0x3D000
X2 = 0x3E000
STAMPS = 0x100000
WSTR = 10240
ORED = 81920; ORP = 528
STAT = 90368
QL = 90496
CNT = 90752
RED = 90880; REDP = 272; REDB = 2176
LNS = 95232
LDS_TOTAL = 95744

LOG2E = '0x3fb8aa3b'
SCALE = '0x3db504f3'
EPS = '0x3727c5ac'
DPP = 'row_mask:0xf bank_mask:0xf'

P_X, P_K, P_V, P_WQ, P_WO, P_GATE, P_UP = 16, 18, 20, 22, 24, 28, 30
P_DOWN, P_C, P_WMOD, P_OUT, P_DBG, P_WS = 32, 34, 36, 38, 40, 42
def sp(p): return f's[{p}:{p+1}]'
def vr(a, n): return f'v[{a}:{a+n-1}]' if n > 1 else f'v{a}'

def generate(cfg):
    A = Asm()
    nst = [0]
    def stamp(i):
        if not cfg.stamps: return
        A('s_memrealtime s[98:99]')
        A('s_waitcnt lgkmcnt(0)')
        A(f'v_writelane_b32 v127, s98, {i}')
    def finish():
        if cfg.stamps:
            A('s_mov_b64 exec, -1')
            stamp(31)
            A('s_getreg_b32 s98, hwreg(HW_REG_XCC_ID)')
            A('v_writelane_b32 v127, s98, 30')
            A('s_lshl_b32 s98, s2, 4')
            A('s_add_u32 s98, s98, s3')
            A('s_lshl_b32 s98, s98, 8')
            A(f's_add_u32 s98, s98, {STAMPS}')
            A('v_lshl_add_u32 v126, v0, 2, s98')
            A(f'global_store_dword v126, v127, {sp(P_WS)}')
        if cfg.span:
            A('s_memrealtime s[98:99]')
            A('s_cmp_eq_u32 s3, 0')
            l = A.newlabel('Lspan')
            A(f's_cbranch_scc0 {l}')
            A('s_mov_b64 exec, 1')
            A('s_waitcnt lgkmcnt(0)')
            A('s_not_b32 s96, s96')
            A('v_mov_b32 v2, s96'); A('v_mov_b32 v3, s98'); A('v_mov_b32 v1, 0')
            A(f'global_atomic_umax v1, v2, {sp(P_DBG)}')
            A(f'global_atomic_umax v1, v3, {sp(P_DBG)} offset:4')
            A(f'{l}:')
        A('s_endpgm')

    def srd(r, p, size):
        A(f's_mov_b32 s{r}, s{p}')
        A(f's_mov_b32 s{r+1}, s{p+1}')
        A(f's_mov_b32 s{r+2}, {size}')
        A(f's_mov_b32 s{r+3}, 0x20000')

    def dma_voff(v, WB, RP):
        lpr = WB // 16
        sh = lpr.bit_length() - 1
        A(f'v_lshrrev_b32 v{v}, {sh}, v0')
        A(f'v_mul_u32_u24 v{v}, {RP}, v{v}')
        A(f'v_and_b32 v1, {lpr-1}, v0')
        A(f'v_lshl_add_u32 v{v}, v1, 4, v{v}')

    def dma(srdr, v, soff, n, step, ldsoff):
        for j in range(n):
            A(f's_add_u32 m0, s12, {ldsoff + 1024*j}')
            A(f'buffer_load_dwordx4 v{v}, s[{srdr}:{srdr+3}], s{soff} offen {cfg.wpol} lds')
            if j + 1 < n: A(f's_add_u32 s{soff}, s{soff}, {step}')

    def tr_addr(v, WB):
        A(f'v_lshrrev_b32 v{v}, 4, v0')
        A(f'v_bfe_u32 v1, v0, 2, 2')
        A(f'v_lshl_add_u32 v{v}, v{v}, 3, v1')
        A(f'v_mul_u32_u24 v{v}, {WB}, v{v}')
        A(f'v_and_b32 v1, 3, v0')
        A(f'v_lshl_add_u32 v{v}, v1, 3, v{v}')
        A(f'v_add_u32 v{v}, s12, v{v}')

    def tr_frag(dst, v, off, WB):
        A(f'ds_read_b64_tr_b16 {vr(dst,2)}, v{v} offset:{off}')
        A(f'ds_read_b64_tr_b16 {vr(dst+2,2)}, v{v} offset:{off + 4*WB}')

    def make_A(a):
        for i, sh in enumerate((4, 8, 12)):
            A(f'v_mov_b32_dpp v{a+2+2*i}, v{a} row_shl:{sh} {DPP}')
            A(f'v_mov_b32_dpp v{a+3+2*i}, v{a+1} row_shl:{sh} {DPP}')

    def mfma(d, a, b, c=None):
        cc = vr(c, 4) if c is not None else '0'
        A(f'v_mfma_f32_16x16x32_bf16 {vr(d,4)}, {vr(a,4)}, {vr(b,4)}, {cc}')

    def red_write(ds, buf):
        A('s_mov_b64 exec, 0xffff')
        for t, d in enumerate(ds):
            A(f'ds_write_b32 v13, v{d} offset:{buf*REDB + 64*t}')
        A('s_mov_b64 exec, -1')
        A('s_waitcnt lgkmcnt(0)')

    def red_read(dst, buf, col):
        A(f'ds_read_b128 {vr(dst,4)}, v14 offset:{buf*REDB + 4*col}')

    def dpp_reduce(regs, steps, op='v_add_f32'):
        for st in steps:
            for r in regs:
                A(f'{op}_dpp v{r}, v{r}, v{r} {st} {DPP}')
    Q1, Q2, HM = 'quad_perm:[1,0,3,2]', 'quad_perm:[2,3,0,1]', 'row_half_mirror'
    R1, R2, R4, R8 = 'row_ror:1', 'row_ror:2', 'row_ror:4', 'row_ror:8'

    def unpack(dst, src, n):
        for i in range(n):
            A(f'v_lshlrev_b32 v{dst+2*i}, 16, v{src+i}')
            A(f'v_and_b32 v{dst+2*i+1}, 0xffff0000, v{src+i}')
    def pack(dst, src, n):
        for i in range(n):
            A(f'v_cvt_pk_bf16_f32 v{dst+i}, v{src+2*i}, v{src+2*i+1}')
    def round4(r, t):
        pack(t, r, 2); unpack(r, t, 2)
    def round1(r):
        A(f'v_cvt_pk_bf16_f32 v{r}, v{r}, v{r}')
        A(f'v_and_b32 v{r}, 0xffff0000, v{r}')

    def xrows(r, t, op):
        for pl in ('v_permlane16_swap_b32', 'v_permlane32_swap_b32'):
            A(f'v_mov_b32 v{t}, v{r}')
            A(f'{pl} v{r}, v{t}')
            A(f'{op} v{r}, v{r}, v{t}')

    def silu4(src, f, t, dst):
        unpack(f, src, 2)
        for i in range(4): A(f'v_mul_f32 v{t+i}, 0xbfb8aa3b, v{f+i}')
        for i in range(4): A(f'v_exp_f32 v{t+i}, v{t+i}')
        for i in range(4): A(f'v_add_f32 v{t+i}, 1.0, v{t+i}')
        for i in range(4): A(f'v_rcp_f32 v{t+i}, v{t+i}')
        for i in range(4): A(f'v_mul_f32 v{f+i}, v{f+i}, v{t+i}')
        pack(dst, f, 2)

    def ln_finish(mean, var):
        round1(var)
        round1(mean)
        A(f'v_add_f32 v{var}, {EPS}, v{var}')
        round1(var)
        A(f'v_sqrt_f32 v{var}, v{var}')
        round1(var)
        A(f'v_rcp_f32 v{var}, v{var}')
    def ln_norm4(x, mean, rinv, t):
        for i in range(4): A(f'v_sub_f32 v{x+i}, v{x+i}, v{mean}')
        round4(x, t)
        for i in range(4): A(f'v_mul_f32 v{x+i}, v{x+i}, v{rinv}')
        round4(x, t)

    def poll_begin():
        l = A.newlabel('Lpoll')
        A('s_mov_b32 s15, 0')
        A(f'{l}:')
        return l
    def poll_end_vcc(l, sleep=0):
        done = l + '_ok'
        A(f's_cbranch_vccz {done}')
        A('s_add_u32 s15, s15, 1')
        A(f's_cmp_lt_u32 s15, {cfg.spin}')
        if sleep: A(f's_sleep {sleep}')
        A(f's_cbranch_scc1 {l}')
        A(f'{done}:')
    def sentinel_check(regs, t):
        regs = list(regs)
        first = True
        while regs:
            if first:
                if len(regs) >= 3:
                    A(f'v_max3_u32 v{t}, v{regs[0]}, v{regs[1]}, v{regs[2]}'); regs = regs[3:]
                else:
                    A(f'v_max_u32 v{t}, v{regs[0]}, v{regs[1]}'); regs = regs[2:]
                first = False
            elif len(regs) >= 2:
                A(f'v_max3_u32 v{t}, v{t}, v{regs[0]}, v{regs[1]}'); regs = regs[2:]
            else:
                A(f'v_max_u32 v{t}, v{t}, v{regs[0]}'); regs = regs[1:]
        A(f'v_cmp_eq_u32 vcc, -1, v{t}')
    def lds_wait(off, target, sleep):
        l = A.newlabel('Lw')
        A('s_mov_b32 s15, 0')
        A(f'{l}:')
        A(f'ds_read_b32 v1, v15 offset:{off}')
        A('s_waitcnt lgkmcnt(0)')
        A('v_readfirstlane_b32 s9, v1')
        A(f's_cmp_ge_u32 s9, {target}')
        A(f's_cbranch_scc1 {l}_ok')
        A('s_add_u32 s15, s15, 1')
        A(f's_cmp_lt_u32 s15, {cfg.spin * 4}')
        if sleep is not None: A(f's_sleep {sleep}')
        A(f's_cbranch_scc1 {l}')
        A(f'{l}_ok:')
    def lds_inc(off):
        A('s_mov_b64 exec, 1')
        A('v_mov_b32 v1, 1')
        A(f'ds_add_u32 v15, v1 offset:{off}')
        A('s_mov_b64 exec, -1')

    def l8_consts():
        A(f's_mul_i32 s12, s3, {WSTR}')
        A('v_bfe_u32 v12, v0, 3, 1')
        A('v_lshlrev_b32 v12, 5, v12')
        A('v_lshrrev_b32 v1, 4, v0')
        A('v_lshl_add_u32 v12, v1, 3, v12')
        A('v_and_b32 v1, 4, v0')
        A('s_lshl_b32 s9, s3, 6')
        A('v_add3_u32 v12, v12, v1, s9')
        A(f's_mul_i32 s9, s3, {REDP}')
        A(f's_add_u32 s9, s9, {RED}')
        A('v_lshl_add_u32 v13, v0, 2, s9')
        A('v_and_b32 v14, 7, v0')
        A(f'v_mul_u32_u24 v14, {REDP}, v14')
        A('v_lshrrev_b32 v1, 3, v0')
        A('v_lshl_add_u32 v14, v1, 4, v14')
        A(f'v_add_u32 v14, {RED}, v14')

    A('s_cmp_ge_u32 s2, 256')
    A('s_cbranch_scc1 Lexit')
    A('s_load_dwordx16 s[16:31], s[0:1], 0')
    A('s_load_dwordx8 s[32:39], s[0:1], 64')
    A('s_load_dwordx4 s[40:43], s[0:1], 96')
    if cfg.stamps or cfg.span:
        A('s_memrealtime s[96:97]')
    A('v_lshrrev_b32 v1, 6, v0')
    A('v_and_b32 v0, 63, v0')
    A('v_readfirstlane_b32 s3, v1')
    A(f'v_mov_b32 v15, {CNT}')
    A('v_mov_b32 v2, 0'); A('v_mov_b32 v3, 0'); A('v_mov_b32 v4, 0'); A('v_mov_b32 v5, 0')
    A('s_lshr_b32 s4, s2, 3')
    A('s_and_b32 s5, s2, 7')
    A('s_cmp_lg_u32 s3, 0')
    A('s_cbranch_scc1 Lnoinit')
    A('ds_write_b128 v15, v[2:5]')
    A('Lnoinit:')
    A('s_and_b32 s6, s4, 1')
    A('s_lshl_b32 s6, s6, 1')
    A('s_xor_b32 s6, s6, s5')
    A(f's_mov_b32 s9, {cfg.NN}')
    A('s_cmp_lt_u32 s6, 2')
    A(f's_cselect_b32 s9, {cfg.NF}, s9')
    A(f's_cselect_b32 s10, 0, {2*cfg.NF - 2*cfg.NN}')
    A('s_mul_i32 s11, s6, s9')
    A('s_add_u32 s10, s10, s11')
    A('s_mul_i32 s11, s3, s9')
    A('s_add_u32 s9, s9, s11')
    A('s_lshr_b32 s11, s11, 4')
    A('s_lshr_b32 s9, s9, 4')
    A('s_sub_u32 s8, s9, s11')
    A('s_add_u32 s10, s10, s11')
    A('s_lshl_b32 s10, s10, 10')
    A('s_lshl_b32 s11, s4, 20')
    A('s_add_u32 s10, s10, s11')
    A('s_lshl_b32 s46, s8, 10')
    A('s_mov_b32 s47, 0x20000')
    A('s_mov_b32 s50, s46')
    A('s_mov_b32 s51, 0x20000')
    A('s_mov_b32 s60, 4096')
    A('s_mov_b32 s61, 8192')
    A('v_bfe_u32 v10, v0, 2, 2')
    A('v_lshlrev_b32 v10, 8, v10')
    A('v_lshrrev_b32 v1, 4, v0')
    A('v_lshl_add_u32 v10, v1, 6, v10')
    A('v_and_b32 v1, 3, v0')
    A('v_lshl_add_u32 v10, v1, 4, v10')
    A('v_lshlrev_b32 v11, 4, v0')
    A('s_waitcnt lgkmcnt(0)')
    A(f's_load_dword s7, {sp(P_WS)}, {EPOCH}')
    A(f's_add_u32 s44, s{P_K}, s10')
    A(f's_addc_u32 s45, s{P_K+1}, 0')
    A(f's_add_u32 s48, s{P_V}, s10')
    A(f's_addc_u32 s49, s{P_V+1}, 0')
    if cfg.stamps:
        A('v_mov_b32 v127, 0')
        A('v_writelane_b32 v127, s96, 0')
    A('s_barrier')
    A('s_cmp_lt_u32 s6, 2')
    A('s_cbranch_scc0 Lkv')

    A('s_cmp_lt_u32 s3, 8')
    A('s_cbranch_scc1 Lfront')
    A('s_barrier'); A('s_barrier'); A('s_barrier')
    A('s_branch Lkv')
    A('Lfront:')
    l8_consts()
    A('s_cmp_lt_u32 s3, 4')
    A('s_cbranch_scc0 Lnosent')
    A('s_lshl_b32 s9, s4, 1'); A('s_add_u32 s9, s9, s6')
    A('s_lshl_b32 s9, s9, 2'); A('s_add_u32 s9, s9, s3')
    A('s_lshl_b32 s9, s9, 10'); A(f's_add_u32 s9, s9, {SENT}')
    A('v_add_u32 v6, s9, v11')
    for i in range(4): A(f'v_mov_b32 v{2+i}, -1')
    A(f'global_store_dwordx4 v6, v[2:5], {sp(P_WS)} sc1')
    A('Lnosent:')
    A('v_lshlrev_b32 v7, 1, v12')
    A(f'global_load_dwordx2 v[48:49], v7, {sp(P_C)}')
    A(f'global_load_dwordx4 v[52:55], v11, {sp(P_X)}')
    A(f'global_load_dwordx2 v[50:51], v7, {sp(P_X)}')
    srd(52, P_WMOD, 512 * 6144)
    srd(56, P_WQ, 512 * 8192)
    dma_voff(8, 32, 6144)
    dma_voff(9, 128, 8192)
    A('s_lshl_b32 s13, s5, 4'); A('s_lshr_b32 s9, s4, 1'); A('s_add_u32 s13, s13, s9')
    A(f's_mul_i32 s9, s3, {64*6144}')
    A('s_lshl_b32 s10, s13, 5')
    A('s_add_u32 s10, s10, s9')
    dma(52, 8, 10, 2, 32 * 6144, 8192)
    A(f's_lshl_b32 s10, s3, 19')
    A('s_lshl_b32 s9, s4, 8'); A('s_add_u32 s10, s10, s9')
    A('s_lshl_b32 s9, s6, 7'); A('s_add_u32 s10, s10, s9')
    dma(56, 9, 10, 8, 8 * 8192, 0)
    tr_addr(8, 32)
    tr_addr(9, 128)
    stamp(1)
    A('s_waitcnt vmcnt(10)')
    silu4(48, 60, 64, 72)
    make_A(72)
    unpack(60, 52, 4)
    A('v_add_f32 v2, v60, v61'); A('v_add_f32 v3, v62, v63'); A('v_add_f32 v4, v64, v65'); A('v_add_f32 v5, v66, v67')
    A('v_add_f32 v2, v2, v3'); A('v_add_f32 v4, v4, v5'); A('v_add_f32 v2, v2, v4')
    dpp_reduce([2], [R1, R2, R4, R8])
    xrows(2, 3, 'v_add_f32')
    A('v_mul_f32 v2, 0x3b000000, v2')
    for i in range(8): A(f'v_sub_f32 v{60+i}, v{60+i}, v2')
    A('v_mul_f32 v4, v60, v60')
    for i in range(1, 8): A(f'v_fmac_f32 v4, v{60+i}, v{60+i}')
    dpp_reduce([4], [R1, R2, R4, R8])
    xrows(4, 3, 'v_add_f32')
    A('v_mul_f32 v4, 0x3b000000, v4')
    ln_finish(2, 4)
    unpack(56, 50, 2)
    ln_norm4(56, 2, 4, 60)
    A('s_waitcnt vmcnt(8)')
    stamp(2)
    tr_frag(16, 8, 8192, 32)
    tr_frag(20, 8, 8192 + 32 * 32, 32)
    A('s_waitcnt lgkmcnt(0)')
    mfma(80, 72, 16)
    mfma(80, 76, 20, 80)
    red_write([80], 0)
    A('s_barrier')
    A('s_add_u32 s7, s7, 1')
    A('s_cmp_eq_u32 s3, 0')
    A('s_cbranch_scc0 Lf1done')
    red_read(60, 0, 0)
    A('s_waitcnt lgkmcnt(0)')
    dpp_reduce([60, 61, 62, 63], [Q1, Q2, HM])
    A('v_cvt_pk_bf16_f32 v64, v60, v61'); A('v_mov_b32 v65, s7')
    A('v_cvt_pk_bf16_f32 v66, v62, v63'); A('v_mov_b32 v67, s7')
    A('s_lshl_b32 s9, s13, 6'); A(f's_add_u32 s9, s9, {MODT}')
    A('v_lshl_add_u32 v6, v0, 1, s9')
    A('s_mov_b64 exec, 0x01010101')
    A(f'global_store_dwordx4 v6, v[64:67], {sp(P_WS)} sc1')
    A('s_mov_b64 exec, -1')
    A('Lf1done:')
    stamp(3)
    A(f'v_mov_b32 v6, {MODT}')
    A('v_lshl_add_u32 v6, v12, 2, v6')
    l = poll_begin()
    A(f'global_load_dwordx4 v[60:63], v6, {sp(P_WS)} sc1')
    A(f'global_load_dwordx4 v[68:71], v6, {sp(P_WS)} offset:2048 sc1')
    A('s_waitcnt vmcnt(0)')
    A('v_xor_b32 v2, s7, v61'); A('v_xor_b32 v3, s7, v63'); A('v_xor_b32 v4, s7, v69'); A('v_xor_b32 v5, s7, v71')
    A('v_or3_b32 v2, v2, v3, v4'); A('v_or_b32 v2, v2, v5')
    A('v_cmp_ne_u32 vcc, 0, v2')
    poll_end_vcc(l, 1)
    stamp(4)
    for blk in range(2):
        for t in range(4):
            tr_frag(16 + 16 * blk + 4 * t, 9, blk * 32 * 128 + 32 * t, 128)
    A('v_mov_b32 v61, v62'); A('v_mov_b32 v69, v70')
    unpack(64, 68, 2)
    for i in range(4): A(f'v_add_f32 v{64+i}, 1.0, v{64+i}')
    round4(64, 2)
    for i in range(4): A(f'v_mul_f32 v{56+i}, v{56+i}, v{64+i}')
    round4(56, 2)
    unpack(64, 60, 2)
    for i in range(4): A(f'v_add_f32 v{56+i}, v{56+i}, v{64+i}')
    pack(72, 56, 2)
    make_A(72)
    A('s_waitcnt lgkmcnt(0)')
    for t in range(4): mfma(80 + 4 * t, 72, 16 + 4 * t)
    for t in range(4): mfma(80 + 4 * t, 76, 32 + 4 * t, 80 + 4 * t)
    red_write([80, 84, 88, 92], 1)
    A('s_barrier')
    A('s_cmp_lt_u32 s3, 2')
    A('s_cbranch_scc0 Lf2done')
    A('s_lshl_b32 s9, s3, 7')
    A('v_add_u32 v14, s9, v14')
    red_read(60, 1, 0)
    A('s_waitcnt lgkmcnt(0)')
    dpp_reduce([60, 61, 62, 63], [Q1, Q2, HM])
    A('v_cvt_pk_bf16_f32 v64, v60, v61'); A('v_mov_b32 v65, s7')
    A('v_cvt_pk_bf16_f32 v66, v62, v63'); A('v_mov_b32 v67, s7')
    A('s_lshl_b32 s10, s4, 9'); A('s_add_u32 s9, s9, s10')
    A('s_lshl_b32 s10, s6, 8'); A('s_add_u32 s9, s9, s10')
    A(f's_add_u32 s9, s9, {QT}')
    A('v_lshl_add_u32 v6, v0, 1, s9')
    A('s_mov_b32 exec_lo, 0x01010101'); A('s_mov_b32 exec_hi, 0x01010101')
    A(f'global_store_dwordx4 v6, v[64:67], {sp(P_WS)} sc1')
    A('s_mov_b64 exec, -1')
    A('Lf2done:')
    A('s_sub_u32 s7, s7, 1')
    A('s_barrier')
    stamp(5)

    A('Lkv:')
    KB, VB = 16, 52
    for base, srdr, v in ((KB, 44, 10), (VB, 48, 11)):
        for j in range(9):
            so = ('0', 's60', 's61')[j >> 2]
            A(f'buffer_load_dwordx4 {vr(base+4*j,4)}, v{v}, s[{srdr}:{srdr+3}], {so} offen offset:{1024*(j&3)} {cfg.kvpol}')
    lds_inc(4)
    stamp(6)
    A('s_waitcnt lgkmcnt(0)')
    A('s_add_u32 s7, s7, 1')
    A('s_cmp_lt_u32 s3, 4')
    A('s_cbranch_scc0 Lqwait')
    A('s_lshl_b32 s9, s4, 9'); A('s_lshl_b32 s10, s3, 7'); A('s_add_u32 s9, s9, s10'); A(f's_add_u32 s9, s9, {QT}')
    A(f's_add_u32 s10, s{P_WS}, s9'); A(f's_addc_u32 s11, s{P_WS+1}, 0')
    A('s_mov_b32 s15, 0')
    A('Lqpoll:')
    A('s_load_dwordx16 s[64:79], s[10:11], 0 glc')
    A('s_load_dwordx16 s[80:95], s[10:11], 64 glc')
    A('s_waitcnt lgkmcnt(0)')
    A('s_xor_b32 s9, s65, s7')
    for i in range(1, 16):
        A(f's_xor_b32 s13, s{65+2*i}, s7')
        A('s_or_b32 s9, s9, s13')
    A('s_cbranch_scc0 Lqgot')
    A('s_add_u32 s15, s15, 1')
    A(f's_cmp_lt_u32 s15, {cfg.spin}')
    A('s_sleep 2')
    A('s_cbranch_scc1 Lqpoll')
    A('Lqgot:')
    for i in range(16): A(f'v_writelane_b32 v1, s{64+2*i}, {i}')
    A('s_lshl_b32 s9, s3, 6'); A(f's_add_u32 s9, s9, {QL}')
    A('v_lshl_add_u32 v2, v0, 2, s9')
    A('s_mov_b64 exec, 0xffff')
    A('ds_write_b32 v2, v1')
    A('s_waitcnt lgkmcnt(0)')
    lds_inc(0)
    A('Lqwait:')
    A('v_and_b32 v2, 1, v0')
    A('v_lshlrev_b32 v2, 4, v2')
    A('v_mov_b32 v3, 0xffff')
    A('v_lshlrev_b32 v3, v2, v3')
    A('v_bfe_u32 v2, v0, 1, 2')
    for wv in range(4):
        A(f'v_cmp_eq_u32 vcc, {wv}, v2')
        A(f'v_cndmask_b32 v{104+wv}, 0, v3, vcc')
    A('v_lshrrev_b32 v8, 4, v0')
    A('v_and_b32 v1, 3, v0')
    A('v_lshl_add_u32 v8, v8, 2, v1')
    A('v_lshlrev_b32 v8, 4, v8')
    A('v_bfe_u32 v9, v0, 2, 2')
    A('s_mov_b32 s62, 0xaaaaaaaa'); A('s_mov_b32 s63, 0xaaaaaaaa')
    A('s_mov_b32 s52, 0xcccccccc'); A('s_mov_b32 s53, 0xcccccccc')
    lds_wait(0, 4, 2)
    stamp(7)
    A(f'v_add_u32 v8, {QL}, v8')
    A('ds_read_b128 v[4:7], v8')
    A('s_waitcnt lgkmcnt(0)')
    for u in range(4):
        A(f'v_cmp_eq_u32 vcc, {u}, v9')
        for i in range(4): A(f'v_cndmask_b32 v{88+4*u+i}, 0, v{4+i}, vcc')
    for G in range(3):
        for u in range(4 if G < 2 else 1):
            j = 4 * G + u
            A(f's_waitcnt vmcnt({17-j})')
            mfma(108 + 4 * G, KB + 4 * j, 88 + 4 * u, None if u == 0 else 108 + 4 * G)
    stamp(8)
    for G in range(3):
        d = 108 + 4 * G
        A(f'v_cndmask_b32 v{d}, v{d}, v{d+1}, s[62:63]')
        A(f'v_cndmask_b32 v{d+2}, v{d+2}, v{d+3}, s[62:63]')
    for G in range(3):
        d = 108 + 4 * G
        A(f'v_cndmask_b32 v{2+G}, v{d}, v{d+2}, s[52:53]')
    dpp_reduce([2, 3, 4], [Q1, Q2])
    A('v_cvt_pk_bf16_f32 v5, v2, v3'); A('v_cvt_pk_bf16_f32 v6, v4, v4')
    A('v_lshlrev_b32 v2, 16, v5'); A('v_and_b32 v3, 0xffff0000, v5'); A('v_lshlrev_b32 v4, 16, v6')
    for G in range(3): A(f'v_mul_f32 v{2+G}, {SCALE}, v{2+G}')
    A('v_cvt_pk_bf16_f32 v5, v2, v3'); A('v_cvt_pk_bf16_f32 v6, v4, v4')
    A('v_lshlrev_b32 v2, 16, v5'); A('v_and_b32 v3, 0xffff0000, v5'); A('v_lshlrev_b32 v4, 16, v6')
    A('v_mov_b32 v7, 0xff800000')
    for G in range(3):
        A(f's_sub_i32 s9, s8, {4*G}')
        A(f'v_cmp_gt_i32 vcc, s9, v9')
        A(f'v_cndmask_b32 v{2+G}, v7, v{2+G}, vcc')
    A('v_max3_f32 v124, v2, v3, v4')
    A('v_max_f32 v124, 0xff7fffff, v124')
    dpp_reduce([124], [R4, R8], 'v_max_f32')
    xrows(124, 5, 'v_max_f32')
    for G in range(3): A(f'v_sub_f32 v{2+G}, v{2+G}, v124')
    for G in range(3): A(f'v_mul_f32 v{2+G}, {LOG2E}, v{2+G}')
    for G in range(3): A(f'v_exp_f32 v{2+G}, v{2+G}')
    A('v_add_f32 v125, v2, v3')
    for G in range(3): A(f'v_cvt_pk_bf16_f32 v{5+G}, v{2+G}, v{2+G}')
    A('v_add_f32 v125, v125, v4')
    dpp_reduce([125], [R4, R8])
    xrows(125, 1, 'v_add_f32')
    A(f's_mul_i32 s9, s3, {ORP}'); A(f's_add_u32 s9, s9, {ORED}')
    A('v_and_b32 v2, 15, v0'); A('v_lshlrev_b32 v2, 5, v2')
    A('v_and_b32 v3, 16, v0')
    A('v_add3_u32 v2, v2, v3, s9')
    A('s_lshl_b32 s9, s3, 3'); A(f's_add_u32 s9, s9, {STAT}')
    A('v_mov_b32 v3, s9')
    A('ds_write_b64 v3, v[124:125]')
    def a_set(j):
        G, u = j >> 2, j & 3
        for i in range(4):
            A(f'v_and_b32_dpp v{88+4*(j&3)+i}, v{5+G}, v{104+i} row_newbcast:{4*u} {DPP}')
    a_set(0); a_set(1)
    for j in range(9):
        if j + 2 < 9: a_set(j + 2)
        A(f's_waitcnt vmcnt({8-j})')
        mfma(120, 88 + 4 * (j & 3), VB + 4 * j, None if j == 0 else 120)
    A('s_mov_b32 exec_hi, 0')
    A('ds_write_b128 v2, v[120:123]')
    A('s_waitcnt lgkmcnt(0)')
    lds_inc(8)
    stamp(9)
    A('s_cmp_lt_u32 s3, 8')
    A('s_cbranch_scc1 Ltail')

    A('v_and_b32 v2, 15, v0')
    A('v_lshlrev_b32 v3, 3, v2')
    A(f'v_add_u32 v3, {STAT}, v3')
    A(f'v_mul_u32_u24 v2, {ORP}, v2')
    A('v_and_b32 v4, 48, v0')
    A('s_sub_u32 s10, s3, 8'); A('s_lshl_b32 s10, s10, 6')
    A(f's_add_u32 s9, s10, {ORED}')
    A('v_add3_u32 v2, v2, v4, s9')
    A(f's_mul_i32 s11, s2, {OPITCH}'); A(f's_add_u32 s11, s11, {OPART}')
    A('s_add_u32 s10, s10, s11')
    A('v_add_u32 v4, s10, v4')
    A('v_mov_b32 v5, s11')
    lds_wait(8, 16, None)
    stamp(10)
    A('ds_read_b64 v[16:17], v3')
    A('ds_read_b128 v[20:23], v2')
    A('s_waitcnt lgkmcnt(1)')
    A('v_mov_b32 v18, v16')
    dpp_reduce([18], [R1, R2, R4, R8], 'v_max_f32')
    A('v_sub_f32 v16, v16, v18')
    A(f'v_mul_f32 v16, {LOG2E}, v16')
    A('v_exp_f32 v16, v16')
    A('s_waitcnt lgkmcnt(0)')
    A('v_mul_f32 v19, v17, v16')
    for i in range(4): A(f'v_mul_f32 v{20+i}, v{20+i}, v16')
    dpp_reduce([20, 21, 22, 23, 19], [R1, R2, R4, R8])
    A('s_mov_b32 exec_lo, 0x00010001'); A('s_mov_b32 exec_hi, 0x00010001')
    A(f'global_store_dwordx4 v4, v[20:23], {sp(P_WS)} sc1')
    A('s_cmp_eq_u32 s3, 8')
    A('s_cbranch_scc0 Lcombdone')
    A('s_mov_b64 exec, 1')
    A(f'global_store_dwordx2 v5, v[18:19], {sp(P_WS)} offset:512 sc1')
    A('Lcombdone:')
    finish()

    A('Ltail:')
    l8_consts()
    A('v_lshlrev_b32 v7, 1, v12')
    A('s_cmp_lt_u32 s4, 16')
    A('s_cbranch_scc1 LroleW')
    A('s_cmp_lt_u32 s4, 22')
    A('s_cbranch_scc1 LroleU')
    A('s_cmp_lt_u32 s4, 28')
    A('s_cbranch_scc1 LroleM')

    A('s_lshl_b32 s13, s5, 2'); A('s_add_u32 s13, s13, s4'); A('s_sub_u32 s13, s13, 28')
    srd(52, P_DOWN, 1376 * 1024)
    srd(56, P_WMOD, 512 * 6144)
    dma_voff(8, 32, 1024)
    dma_voff(9, 32, 6144)
    A('s_lshl_b32 s10, s3, 15'); A('s_lshl_b32 s9, s13, 5'); A('s_add_u32 s10, s10, s9')
    A(f's_mul_i32 s11, s3, {64*6144}'); A('s_add_u32 s11, s11, s9'); A(f's_add_u32 s11, s11, {2560*2}')
    lds_wait(4, 16, 1)
    stamp(11)
    A(f'global_load_dwordx2 v[48:49], v7, {sp(P_C)}')
    dma(56, 9, 11, 2, 32 * 6144, 6144)
    dma(52, 8, 10, 6, 8 * 32 * 1024, 0)
    tr_addr(8, 32)
    A('s_waitcnt vmcnt(8)')
    silu4(48, 60, 64, 72)
    make_A(72)
    A('s_waitcnt vmcnt(6)')
    tr_frag(16, 8, 6144, 32); tr_frag(20, 8, 6144 + 1024, 32)
    A('s_waitcnt lgkmcnt(0)')
    mfma(80, 72, 16); mfma(80, 76, 20, 80)
    red_write([80], 0)
    A('s_waitcnt vmcnt(0)')
    stamp(12)
    for j in range(6): tr_frag(16 + 4 * j, 8, 1024 * j, 32)
    A('s_barrier')
    A('v_and_b32 v6, 48, v0')
    A('s_lshl_b32 s9, s3, 6'); A(f's_add_u32 s9, s9, {HH}')
    A('v_add_u32 v6, s9, v6')
    A('s_cmp_lt_u32 s3, 3')
    A('s_cselect_b32 s9, 2560, 0')
    A('v_add_u32 v5, s9, v6')
    A('s_cmp_eq_u32 s3, 0')
    A('s_cbranch_scc0 LDnogb')
    red_read(96, 0, 0)
    A('v_and_b32 v4, 24, v0')
    A('s_lshl_b32 s9, s13, 5')
    A('v_add_u32 v4, s9, v4')
    A(f'v_add_u32 v3, {X2}, v4')
    A('s_waitcnt lgkmcnt(0)')
    dpp_reduce([96, 97, 98, 99], [Q1, Q2, HM])
    round4(96, 100)
    l = poll_begin()
    A(f'global_load_dwordx2 v[104:105], v3, {sp(P_WS)} sc1')
    A('s_waitcnt vmcnt(0)')
    sentinel_check([104, 105], 2)
    poll_end_vcc(l, 1)
    unpack(100, 104, 2)
    A('LDnogb:')
    stamp(13)
    l = poll_begin()
    for j in range(5):
        A(f'global_load_dwordx4 {vr(48+4*j,4)}, v6, {sp(P_WS)} offset:{512*j} sc1')
    A(f'global_load_dwordx4 v[68:71], v5, {sp(P_WS)} sc1')
    A('s_waitcnt vmcnt(0)')
    sentinel_check(range(48, 72), 2)
    poll_end_vcc(l)
    stamp(14)
    A('s_waitcnt lgkmcnt(0)')
    for j in range(6): mfma(80, 48 + 4 * j, 16 + 4 * j, None if j == 0 else 80)
    red_write([80], 1)
    A('s_barrier')
    A('s_cmp_eq_u32 s3, 0')
    A('s_cbranch_scc0 LDend')
    red_read(60, 1, 0)
    A('s_waitcnt lgkmcnt(0)')
    dpp_reduce([60, 61, 62, 63], [Q1, Q2, HM])
    round4(60, 64)
    for i in range(4): A(f'v_mul_f32 v{60+i}, v{60+i}, v{96+i}')
    round4(60, 64)
    for i in range(4): A(f'v_add_f32 v{60+i}, v{60+i}, v{100+i}')
    pack(64, 60, 2)
    A('s_mov_b64 exec, 0x01010101')
    A(f'global_store_dwordx2 v4, v[64:65], {sp(P_OUT)}')
    A('s_cmp_eq_u32 s13, 0')
    A('s_cbranch_scc0 LDend')
    A('s_mov_b64 exec, 1')
    A('v_mov_b32 v2, 0'); A('v_mov_b32 v3, s7')
    A(f'global_store_dword v2, v3, {sp(P_WS)} offset:{EPOCH} sc1')
    if cfg.fixspan:
        A('Lfix:')
        A('s_memrealtime s[98:99]')
        A('s_waitcnt lgkmcnt(0)')
        A('s_sub_u32 s98, s98, s96')
        A(f's_cmp_lt_u32 s98, {cfg.fixspan}')
        A('s_cbranch_scc1 Lfix')
    A('LDend:')
    finish()

    A('LroleM:')
    A('s_mul_i32 s13, s5, 6'); A('s_add_u32 s13, s13, s4'); A('s_sub_u32 s13, s13, 22')
    srd(52, P_WMOD, 512 * 6144)
    dma_voff(8, 64, 6144)
    A(f's_mul_i32 s10, s3, {64*6144}'); A('s_lshl_b32 s9, s13, 6'); A('s_add_u32 s10, s10, s9'); A('s_add_u32 s10, s10, 2048')
    lds_wait(4, 16, 1)
    stamp(11)
    A(f'global_load_dwordx2 v[48:49], v7, {sp(P_C)}')
    dma(52, 8, 10, 4, 16 * 6144, 0)
    tr_addr(8, 64)
    A('s_waitcnt vmcnt(4)')
    silu4(48, 60, 64, 72)
    make_A(72)
    A('s_waitcnt vmcnt(0)')
    stamp(12)
    for blk in range(2):
        for t in range(2): tr_frag(16 + 8 * blk + 4 * t, 8, blk * 2048 + 32 * t, 64)
    A('s_waitcnt lgkmcnt(0)')
    for t in range(2): mfma(80 + 4 * t, 72, 16 + 4 * t)
    for t in range(2): mfma(80 + 4 * t, 76, 24 + 4 * t, 80 + 4 * t)
    red_write([80, 84], 0)
    A('s_barrier')
    A('s_cmp_eq_u32 s3, 0')
    A('s_cbranch_scc0 LMend')
    red_read(60, 0, 0)
    A('s_lshl_b32 s9, s13, 6'); A(f's_add_u32 s9, s9, {MOD2}')
    A('v_add_u32 v6, s9, v0')
    A('s_waitcnt lgkmcnt(0)')
    dpp_reduce([60, 61, 62, 63], [Q1, Q2, HM])
    pack(64, 60, 2)
    A('s_mov_b32 exec_lo, 0x01010101'); A('s_mov_b32 exec_hi, 0x01010101')
    A(f'global_store_dwordx2 v6, v[64:65], {sp(P_WS)} sc1')
    A('LMend:')
    finish()

    A('LroleW:')
    srd(52, P_WO, 4096 * 1024)
    dma_voff(8, 64, 1024)
    A('s_lshl_b32 s10, s5, 19'); A('s_lshl_b32 s9, s3, 16'); A('s_add_u32 s10, s10, s9')
    A('s_lshl_b32 s9, s4, 6'); A('s_add_u32 s10, s10, s9')
    lds_wait(4, 16, 1)
    stamp(11)
    dma(52, 8, 10, 4, 16 * 1024, 0)
    tr_addr(8, 64)
    A('s_lshl_b32 s9, s5, 2'); A('s_lshr_b32 s10, s3, 1'); A('s_add_u32 s9, s9, s10')
    A(f's_mul_i32 s9, s9, {8*OPITCH}'); A(f's_add_u32 s9, s9, {OPART}')
    A('v_and_b32 v5, 3, v0')
    A(f'v_mul_u32_u24 v5, {OPITCH}, v5')
    A('v_add_u32 v5, s9, v5')
    A('v_and_b32 v6, 127, v12')
    A('v_lshl_add_u32 v6, v6, 2, v5')
    A('s_lshl_b32 s9, s5, 11'); A('s_lshl_b32 s10, s4, 7'); A('s_add_u32 s9, s9, s10'); A(f's_add_u32 s9, s9, {YPART}')
    A('v_lshl_add_u32 v4, v0, 1, s9')
    A('s_waitcnt vmcnt(0)')
    stamp(12)
    for blk in range(2):
        for t in range(2): tr_frag(16 + 8 * blk + 4 * t, 8, blk * 2048 + 32 * t, 64)
    l = poll_begin()
    A(f'global_load_dwordx2 v[56:57], v5, {sp(P_WS)} offset:512 sc1')
    A(f'global_load_dwordx2 v[58:59], v5, {sp(P_WS)} offset:{512+4*OPITCH} sc1')
    A(f'global_load_dwordx4 v[48:51], v6, {sp(P_WS)} sc1')
    A(f'global_load_dwordx4 v[52:55], v6, {sp(P_WS)} offset:{4*OPITCH} sc1')
    A('s_waitcnt vmcnt(0)')
    sentinel_check(range(48, 60), 2)
    poll_end_vcc(l)
    stamp(13)
    A('v_max_f32 v2, v56, v58')
    dpp_reduce([2], [Q1, Q2], 'v_max_f32')
    A('v_sub_f32 v56, v56, v2'); A('v_sub_f32 v58, v58, v2')
    A(f'v_mul_f32 v56, {LOG2E}, v56'); A(f'v_mul_f32 v58, {LOG2E}, v58')
    A('v_exp_f32 v56, v56'); A('v_exp_f32 v58, v58')
    A('v_mul_f32 v57, v57, v56')
    for i in range(4): A(f'v_mul_f32 v{48+i}, v{48+i}, v56')
    A('v_fmac_f32 v57, v59, v58')
    for i in range(4): A(f'v_fmac_f32 v{48+i}, v{52+i}, v58')
    dpp_reduce([57, 48, 49, 50, 51], [Q1, Q2])
    A('v_rcp_f32 v57, v57')
    for i in range(4): A(f'v_mul_f32 v{48+i}, v{48+i}, v57')
    pack(72, 48, 2)
    make_A(72)
    A('s_waitcnt lgkmcnt(0)')
    for t in range(2): mfma(80 + 4 * t, 72, 16 + 4 * t)
    for t in range(2): mfma(80 + 4 * t, 76, 24 + 4 * t, 80 + 4 * t)
    red_write([80, 84], 0)
    A('s_barrier')
    A('s_cmp_eq_u32 s3, 0')
    A('s_cbranch_scc0 LWend')
    red_read(60, 0, 0)
    A('s_waitcnt lgkmcnt(0)')
    dpp_reduce([60, 61, 62, 63], [Q1, Q2, HM])
    A('s_mov_b32 exec_lo, 0x01010101'); A('s_mov_b32 exec_hi, 0x01010101')
    A(f'global_store_dwordx4 v4, v[60:63], {sp(P_WS)} sc1')
    A('LWend:')
    finish()

    A('LroleU:')
    A('s_sub_u32 s9, s4, 16')
    A('s_cmp_lt_u32 s5, 3')
    A('s_cselect_b32 s10, 6, 5')
    A('s_cmp_lt_u32 s9, s10')
    A('s_cbranch_scc0 LUend')
    A('s_min_u32 s10, s5, 3'); A('s_mul_i32 s13, s5, 5'); A('s_add_u32 s13, s13, s10'); A('s_add_u32 s13, s13, s9')
    srd(52, P_GATE, 512 * 2752)
    srd(56, P_UP, 512 * 2752)
    dma_voff(8, 64, 2752)
    A(f's_mul_i32 s10, s3, {64*2752}'); A('s_lshl_b32 s9, s13, 6'); A('s_add_u32 s10, s10, s9')
    A('s_mov_b32 s11, s10')
    lds_wait(4, 16, 1)
    stamp(11)
    A(f'global_load_dwordx2 v[56:57], v7, {sp(P_X)}')
    dma(52, 8, 10, 4, 16 * 2752, 0)
    dma(56, 8, 11, 4, 16 * 2752, 4096)
    tr_addr(8, 64)
    A(f'v_add_u32 v5, {MOD2}, v7')
    A('v_and_b32 v6, 3, v0')
    A('v_lshlrev_b32 v6, 11, v6')
    A('v_lshl_add_u32 v6, v12, 2, v6')
    A(f'v_add_u32 v6, {YPART}, v6')
    A('v_add_u32 v9, 8192, v6')
    A('v_lshrrev_b32 v10, 4, v0'); A('s_lshl_b32 s9, s3, 5'); A(f's_add_u32 s9, s9, {LNS}')
    A('v_lshl_add_u32 v10, v10, 3, s9')
    A('v_and_b32 v11, 15, v0'); A('v_lshlrev_b32 v11, 4, v11'); A(f'v_add_u32 v11, {LNS}, v11')
    l = poll_begin()
    A(f'global_load_dwordx2 v[58:59], v5, {sp(P_WS)} sc1')
    A(f'global_load_dwordx2 v[60:61], v5, {sp(P_WS)} offset:1024 sc1')
    A(f'global_load_dwordx2 v[62:63], v5, {sp(P_WS)} offset:2048 sc1')
    A('s_waitcnt vmcnt(0)')
    sentinel_check(range(58, 64), 2)
    poll_end_vcc(l, 1)
    stamp(12)
    for m in range(2):
        for blk in range(2):
            for t in range(2): tr_frag(16 + 16 * blk + 8 * m + 4 * t, 8, 4096 * m + blk * 2048 + 32 * t, 64)
    unpack(96, 56, 2)
    unpack(100, 58, 2)
    unpack(104, 60, 2)
    unpack(108, 62, 2)
    for i in range(4): A(f'v_add_f32 v{108+i}, 1.0, v{108+i}')
    round4(108, 2)
    l = poll_begin()
    A(f'global_load_dwordx4 v[48:51], v6, {sp(P_WS)} sc1')
    A(f'global_load_dwordx4 v[52:55], v9, {sp(P_WS)} sc1')
    A('s_waitcnt vmcnt(0)')
    sentinel_check(range(48, 56), 2)
    poll_end_vcc(l)
    stamp(13)
    for i in range(4): A(f'v_add_f32 v{48+i}, v{48+i}, v{52+i}')
    dpp_reduce([48, 49, 50, 51], [Q1, Q2])
    round4(48, 2)
    for i in range(4): A(f'v_mul_f32 v{48+i}, v{48+i}, v{100+i}')
    round4(48, 2)
    for i in range(4): A(f'v_add_f32 v{48+i}, v{48+i}, v{96+i}')
    pack(56, 48, 2)
    unpack(48, 56, 2)
    A('v_add_f32 v2, v48, v49'); A('v_add_f32 v3, v50, v51'); A('v_add_f32 v2, v2, v3')
    dpp_reduce([2], [R4, R8])
    A('v_mul_f32 v2, 0x3d800000, v2')
    for i in range(4): A(f'v_sub_f32 v{52+i}, v{48+i}, v2')
    A('v_mul_f32 v3, v52, v52')
    for i in range(1, 4): A(f'v_fmac_f32 v3, v{52+i}, v{52+i}')
    dpp_reduce([3], [R4, R8])
    A('ds_write_b64 v10, v[2:3]')
    A('s_cmp_eq_u32 s13, 0')
    A('s_cbranch_scc0 LUnox2')
    A(f'v_add_u32 v5, {X2}, v7')
    A('s_mov_b32 exec_lo, 0x11111111'); A('s_mov_b32 exec_hi, 0x11111111')
    A(f'global_store_dwordx2 v5, v[56:57], {sp(P_WS)} sc1')
    A('s_mov_b64 exec, -1')
    A('LUnox2:')
    A('s_waitcnt lgkmcnt(0)')
    A('s_barrier')
    A('ds_read_b128 v[60:63], v11')
    A('s_waitcnt lgkmcnt(0)')
    A('v_add_f32 v2, v60, v62')
    A('v_add_f32 v3, v61, v63')
    dpp_reduce([2], [R1, R2, R4, R8])
    A('v_mul_f32 v2, 0x3d000000, v2')
    A('v_sub_f32 v60, v60, v2'); A('v_sub_f32 v62, v62, v2')
    A('v_mul_f32 v60, v60, v60'); A('v_fmac_f32 v60, v62, v62')
    A('v_fmac_f32 v3, 0x41800000, v60')
    dpp_reduce([3], [R1, R2, R4, R8])
    A('v_mul_f32 v3, 0x3b000000, v3')
    ln_finish(2, 3)
    ln_norm4(48, 2, 3, 60)
    for i in range(4): A(f'v_mul_f32 v{48+i}, v{48+i}, v{108+i}')
    round4(48, 60)
    for i in range(4): A(f'v_add_f32 v{48+i}, v{48+i}, v{104+i}')
    pack(72, 48, 2)
    make_A(72)
    for t in range(4): mfma(80 + 4 * t, 72, 16 + 4 * t)
    for t in range(4): mfma(80 + 4 * t, 76, 32 + 4 * t, 80 + 4 * t)
    red_write([80, 84, 88, 92], 0)
    A('s_barrier')
    stamp(14)
    A('s_cmp_eq_u32 s3, 0')
    A('s_cbranch_scc0 LUend')
    red_read(60, 0, 0)
    red_read(64, 0, 32)
    A('s_lshl_b32 s9, s13, 6'); A(f's_add_u32 s9, s9, {HH}')
    A('v_add_u32 v6, s9, v0')
    A('s_waitcnt lgkmcnt(0)')
    dpp_reduce(list(range(60, 68)), [Q1, Q2, HM])
    round4(60, 2); round4(64, 4)
    for i in range(4): A(f'v_mul_f32 v{60+i}, v{60+i}, v{64+i}')
    pack(64, 60, 2)
    A(f'v_mov_b32_dpp v66, v64 row_shl:8 {DPP}')
    A(f'v_mov_b32_dpp v67, v65 row_shl:8 {DPP}')
    A('s_mov_b32 exec_lo, 0x00010001'); A('s_mov_b32 exec_hi, 0x00010001')
    A(f'global_store_dwordx4 v6, v[64:67], {sp(P_WS)} sc1')
    A('LUend:')
    finish()
    A('Lexit:')
    A('s_endpgm')
    return A.text()

HEADER = open('cdna_kernels/' + NAME + '.s.ref').read().split('; Override launch')[0]

def full(cfg):
    body = generate(cfg)
    k = NAME + '_kernel'
    return (HEADER +
        f'; @launch grid=(256,1,1) block=(1024,1,1) lds={LDS_TOTAL}\n'
        '.amdgcn_target "amdgcn-amd-amdhsa--gfx950"\n.text\n'
        f'.globl {k}\n.p2align 8\n.type {k},@function\n{k}:\n' + body +
        '.section .rodata,"a"\n.p2align 6\n'
        f'.amdhsa_kernel {k}\n'
        '  .amdhsa_next_free_vgpr 128\n  .amdhsa_next_free_sgpr 102\n  .amdhsa_accum_offset 128\n'
        '  .amdhsa_group_segment_fixed_size 0\n  .amdhsa_kernarg_size 112\n'
        '  .amdhsa_user_sgpr_count 2\n  .amdhsa_user_sgpr_kernarg_segment_ptr 1\n'
        '  .amdhsa_system_sgpr_workgroup_id_x 1\n  .amdhsa_float_denorm_mode_32 3\n'
        '.end_amdhsa_kernel\n')

if __name__ == '__main__':
    out = sys.argv[1]
    kw = {}
    for a in sys.argv[2:]:
        k, v = a.split('=')
        try: v = int(v, 0)
        except ValueError: pass
        kw[k] = v
    open(out, 'w').write(full(Cfg(**kw)))
```
